```python
import torch

def _softmax(x, axis=-1):
    return torch.softmax(x, dim=axis)
def _gelu(x):
    return torch.nn.functional.gelu(x, approximate="tanh")
def _silu(x):
    return torch.nn.functional.silu(x)
def _sigmoid(x):
    return torch.sigmoid(x)
def _layernorm(x, axis=-1, eps=1e-5):
    m = x.mean(dim=axis, keepdim=True)
    v = x.var(dim=axis, keepdim=True, unbiased=False)
    return (x - m) / torch.sqrt(v + eps)
def _scatter_add(tgt, idx, src, axis=0):
    return tgt.clone().index_add_(axis, idx, src)
def _segment_sum(src, seg, n):
    out = torch.zeros((n,) + src.shape[1:], dtype=src.dtype)
    return out.index_add_(0, seg, src)
def _pad(x, pw):
    flat = tuple(v for pair in reversed(pw) for v in pair)
    return torch.nn.functional.pad(x, flat)

kernel_name = 'gated_mix__sliding_block__sliding_local_dilated__prompt'

def setup_inputs():

    _w = (lambda a: (lambda t: t.to(torch.bfloat16) if t.is_floating_point() else t)(torch.as_tensor(a)))
    def _A_setup():
        B, S, D = 1, 2048, 448
        return {
            "x": _w((lambda *s: torch.randn(*s, dtype=torch.bfloat16) * 0.05)(B, S, D)),
            "wqkv": _w((lambda *s: torch.randn(*s, dtype=torch.bfloat16) * 1.6)(D, 3 * D)),
            "wo": _w((lambda *s: torch.randn(*s, dtype=torch.bfloat16) * 0.05)(D, D)),
        }
    _A_in = _A_setup()

    def _B_setup():
        B, S, D = 1, 2048, 448
        return {
            "x": _w((lambda *s: torch.randn(*s, dtype=torch.bfloat16) * 0.05)(B, S, D)),
            "wqkv": _w((lambda *s: torch.randn(*s, dtype=torch.bfloat16) * 1.6)(D, 3 * D)),
            "wo": _w((lambda *s: torch.randn(*s, dtype=torch.bfloat16) * 0.05)(D, D)),
        }
    _B_in = _B_setup()

    return {
        "A_x": _A_in["x"],
        "A_wqkv": _A_in["wqkv"],
        "A_wo": _A_in["wo"],
        "B_x": _B_in["x"],
        "B_wqkv": _B_in["wqkv"],
        "B_wo": _B_in["wo"],
        "gate_w": _w((lambda *s: torch.randn(*s, dtype=torch.bfloat16) * 0.05)(448) * 16.0),
    }

def reference(A_x, A_wqkv, A_wo, B_x, B_wqkv, B_wo, gate_w):
    def _A_ref(x, wqkv, wo):
        B, S, D = x.shape
        H = 16; Dh = D // H; W = 256
        qkv = (lambda x, *d: x.permute(*d))((x @ wqkv).reshape(B, S, 3, H, Dh), 2, 0, 3, 1, 4)
        q, k, v = qkv[0], qkv[1], qkv[2]
        scores = torch.einsum("bhqd,bhkd->bhqk", q, k) * (Dh ** -0.5)
        idx = torch.arange(S)
        mask = (idx[:, None] - idx[None, :] >= 0) & (idx[:, None] - idx[None, :] < W)
        scores = torch.where(mask[None, None], scores, -1e9)
        p = _softmax(scores, axis=-1)
        o = torch.einsum("bhqk,bhkd->bhqd", p, v)
        return (lambda x, *d: x.permute(*d))(o, 0, 2, 1, 3).reshape(B, S, D) @ wo

    def _B_ref(x, wqkv, wo):
        B, S, D = x.shape
        H = 16; Dh = D // H
        W, dil = 8, 2
        qkv = (lambda x, *d: x.permute(*d))((x @ wqkv).reshape(B, S, 3, H, Dh), 2, 0, 3, 1, 4)
        q, k, v = qkv[0], qkv[1], qkv[2]
        scale = Dh ** -0.5
        pos = torch.arange(S)
        off = torch.arange(W) * dil
        idx = pos[:, None] - off[None, :]
        mask = idx >= 0
        idx_c = torch.where(mask, idx, 0).reshape(-1)
        kg = k[:, :, idx_c, :].reshape(B, H, S, W, Dh)
        vg = v[:, :, idx_c, :].reshape(B, H, S, W, Dh)
        logits = torch.einsum("bhsd,bhswd->bhsw", q, kg) * scale
        logits = torch.where(mask[None, None, :, :], logits, -1e9)
        attn = _softmax(logits, axis=-1)
        o = torch.einsum("bhsw,bhswd->bhsd", attn, vg)
        return (lambda x, *d: x.permute(*d))(o, 0, 2, 1, 3).reshape(B, S, D) @ wo

    x = A_x
    g = _sigmoid((x * gate_w).sum(-1, keepdims=True))
    a = _A_ref(x, A_wqkv, A_wo)
    b = _B_ref(x, B_wqkv, B_wo)
    return g * a + (1 - g) * b
```

```python
class Asm:
    def __init__(self):
        self.lines = []
        self.nlab = 0
    def __call__(self, s):
        for l in s.strip("\n").split("\n"):
            self.lines.append("    " + l.strip())
    def label(self, name):
        self.lines.append(name + ":")
    def newlabel(self, base="L"):
        self.nlab += 1
        return f"{base}_{self.nlab}"
    def comment(self, s):
        self.lines.append("    ; " + s)
    def text(self):
        return "\n".join(self.lines) + "\n"

def vr(a, n=1):
    return f"v{a}" if n == 1 else f"v[{a}:{a+n-1}]"
def ar(a, n=1):
    return f"a{a}" if n == 1 else f"a[{a}:{a+n-1}]"
def sr(a, n=1):
    return f"s{a}" if n == 1 else f"s[{a}:{a+n-1}]"

def kernel_header(name):
    return f""".globl {name}
.p2align 8
.type {name},@function
{name}:
"""
def kernel_desc(name, vgpr, sgpr, accum, karg=80):
    return f""".p2align 6
.amdhsa_kernel {name}
  .amdhsa_next_free_vgpr {vgpr}
  .amdhsa_next_free_sgpr {sgpr}
  .amdhsa_accum_offset {accum}
  .amdhsa_group_segment_fixed_size 0
  .amdhsa_kernarg_size {karg}
  .amdhsa_user_sgpr_count 2
  .amdhsa_user_sgpr_kernarg_segment_ptr 1
  .amdhsa_system_sgpr_workgroup_id_x 1
  .amdhsa_float_denorm_mode_32 3
.end_amdhsa_kernel
"""
```

```python
from asmlib import *
import sys

NAME = "gated_mix__sliding_block__sliding_local_dilated__prompt"
S, D, H, DH = 2048, 448, 16, 28
WROW = 2688
XROW = 896
SLOT = S * 64
OFF_QKV = 0
OFF_O = 48 * SLOT
WS_USED = OFF_O + 32 * SLOT
PS = 7184
BS = 3 * PS
NEG_INF = 0xff800000
SCALE_LOG2E = (DH ** -0.5) * 1.4426950408889634

import struct
def f2u(f): return struct.unpack("<I", struct.pack("<f", f))[0]

def sigma_code(a, vdst, vR, vtmp):
    a(f"""
    v_and_b32 {vr(vdst)}, 1, {vr(vR)}
    v_lshlrev_b32 {vr(vdst)}, 1, {vr(vdst)}
    v_lshrrev_b32 {vr(vtmp)}, 1, {vr(vR)}
    v_mul_u32_u24 {vr(vtmp)}, 3, {vr(vtmp)}
    v_xor_b32 {vr(vdst)}, {vr(vdst)}, {vr(vtmp)}
    """)

def make_srd(a, s, base_pair, size, off_lo=None):
    if off_lo is None:
        a(f"s_mov_b32 s{s}, s{base_pair}\ns_mov_b32 s{s+1}, s{base_pair+1}")
    else:
        a(f"s_add_u32 s{s}, s{base_pair}, {off_lo}\ns_addc_u32 s{s+1}, s{base_pair+1}, 0")
    a(f"s_mov_b32 s{s+2}, {size}\ns_mov_b32 s{s+3}, 0x20000")

def gen_k1(a):
    sX, sW, sWS = 4, 8, 12
    sWAVE, sRB, sCB, sBR = 16, 17, 18, 19
    sBP, sWOFF, sPSTR, sT0, sT1, sT2, sXOFF, sM0 = 20, 21, 22, 23, 24, 25, 26, 27
    sLDSW = 28
    vLANE, vWOFF, vX0, vX1, vXH = 1, 2, 3, 4, 5
    vTR, vTR3 = 6, 7
    vT0, vT1, vT2, vT3 = 8, 9, 10, 11
    vEP = 12
    vPAD = 23
    vWF = 24
    NRING = 6
    vACC = 48
    vACCH = 136
    vMISC = 168
    aX = 0
    aXH = 112

    LEND = "K1_END"
    a("s_cmp_ge_u32 s2, 256")
    a(f"s_cbranch_scc1 {LEND}")
    a("""
    s_load_dwordx2 s[30:31], s[0:1], 0
    s_load_dwordx2 s[32:33], s[0:1], 8
    s_load_dwordx2 s[34:35], s[0:1], 32
    s_load_dwordx2 s[36:37], s[0:1], 72
    """)
    a(f"""
    v_and_b32 {vr(vLANE)}, 63, v0
    v_lshrrev_b32 {vr(vT0)}, 6, v0
    s_nop 0
    v_readfirstlane_b32 s{sWAVE}, {vr(vT0)}
    s_and_b32 s{sT0}, s2, 7            ; xcd
    s_lshr_b32 s{sT1}, s2, 3           ; idx
    s_lshr_b32 s{sBR}, s{sT1}, 4       ; branch
    s_lshr_b32 s{sRB}, s{sT0}, 1
    s_lshl_b32 s{sRB}, s{sRB}, 2
    s_lshr_b32 s{sT2}, s{sT1}, 2
    s_and_b32 s{sT2}, s{sT2}, 3
    s_add_u32 s{sRB}, s{sRB}, s{sT2}
    s_and_b32 s{sCB}, s{sT0}, 1
    s_lshl_b32 s{sCB}, s{sCB}, 2
    s_and_b32 s{sT2}, s{sT1}, 3
    s_add_u32 s{sCB}, s{sCB}, s{sT2}
    """)
    a(f"""
    s_and_b32 s{sBP}, s{sT1}, 15
    s_cmp_ge_u32 s{sBP}, 7
    s_cselect_b32 s{sT2}, 7, 0
    s_sub_u32 s{sBP}, s{sBP}, s{sT2}
    s_cmp_ge_u32 s{sBP}, 7
    s_cselect_b32 s{sT2}, 7, 0
    s_sub_u32 s{sBP}, s{sBP}, s{sT2}
    """)
    a(f"""
    v_mul_u32_u24 {vr(vT0)}, 37, {vr(vLANE)}
    v_lshrrev_b32 {vr(vT0)}, 8, {vr(vT0)}
    v_mul_u32_u24 {vr(vT1)}, 7, {vr(vT0)}
    v_sub_u32 {vr(vT1)}, {vr(vLANE)}, {vr(vT1)}  ; cc
    v_and_b32 {vr(vT2)}, 1, {vr(vT0)}
    v_lshlrev_b32 {vr(vT2)}, 4, {vr(vT2)}
    v_lshrrev_b32 {vr(vT0)}, 1, {vr(vT0)}
    v_add_u32 {vr(vT2)}, {vr(vT2)}, {vr(vT0)}    ; kl
    v_mul_u32_u24 {vr(vT2)}, {WROW}, {vr(vT2)}
    v_lshlrev_b32 {vr(vT1)}, 4, {vr(vT1)}
    v_add_u32 {vr(vWOFF)}, {vr(vT2)}, {vr(vT1)}
    """)
    a(f"""
    s_lshl_b32 s{sT0}, s{sRB}, 7
    s_lshl_b32 s{sT1}, s{sWAVE}, 5
    s_add_u32 s{sT0}, s{sT0}, s{sT1}
    v_and_b32 {vr(vT0)}, 15, {vr(vLANE)}
    v_lshrrev_b32 {vr(vT1)}, 4, {vr(vLANE)}
    v_lshlrev_b32 {vr(vT1)}, 4, {vr(vT1)}        ; g*16
    v_add_u32 {vr(vT2)}, s{sT0}, {vr(vT0)}
    v_mul_u32_u24 {vr(vT2)}, {XROW}, {vr(vT2)}
    v_add_u32 {vr(vX0)}, {vr(vT2)}, {vr(vT1)}
    v_add_u32 {vr(vX1)}, {16*XROW}, {vr(vX0)}
    s_lshl_b32 s{sT0}, s{sRB}, 7
    s_sub_u32 s{sT0}, s{sT0}, 16
    v_add_u32 {vr(vT2)}, s{sT0}, {vr(vT0)}
    v_mul_i32_i24 {vr(vT2)}, {XROW}, {vr(vT2)}
    v_add_u32 {vr(vXH)}, {vr(vT2)}, {vr(vT1)}
    """)
    a("s_waitcnt lgkmcnt(0)")
    make_srd(a, sX, 30, S * XROW)
    a(f"""
    s_cmp_eq_u32 s{sBR}, 0
    s_cselect_b32 s{sW}, s32, s34
    s_cselect_b32 s{sW+1}, s33, s35
    s_mov_b32 s{sW+2}, {D*WROW}
    s_mov_b32 s{sW+3}, 0x20000
    s_mov_b32 s{sT1}, 896
    s_cselect_b32 s{sPSTR}, 112, s{sT1}
    s_mov_b32 s{sT1}, 112
    s_cselect_b32 s{sT0}, 336, s{sT1}
    s_mul_i32 s{sWOFF}, s{sCB}, s{sT0}            ; colbase
    """)
    make_srd(a, sWS, 36, WS_USED)
    a(f"""
    s_lshr_b32 s{sT0}, s{sWAVE}, 1
    s_lshl_b32 s{sT0}, s{sT0}, 5
    s_and_b32 s{sT1}, s{sWAVE}, 1
    s_lshl_b32 s{sT1}, s{sT1}, 2
    s_add_u32 s{sT0}, s{sT0}, s{sT1}
    s_mul_i32 s{sT0}, s{sT0}, {WROW}
    s_add_u32 s{sWOFF}, s{sWOFF}, s{sT0}
    s_mul_i32 s{sLDSW}, s{sWAVE}, {2*896}
    """)

    def issue_block(b, halo):
        a(f"""
        s_mul_i32 s{sT0}, s{sBP}, {64*WROW}
        s_add_u32 s{sT0}, s{sT0}, s{sWOFF}
        s_lshl_b32 s{sXOFF}, s{sBP}, 7
        s_mov_b32 exec_hi, 0x00ffffff
        """)
        for p in range(3):
            for e in range(2):
                a(f"s_add_u32 s{sM0}, s{sLDSW}, {b*BS + p*PS + e*896}")
                a(f"s_mov_b32 m0, s{sM0}")
                if e == 0:
                    a(f"s_mov_b32 s{sT1}, s{sT0}")
                else:
                    a(f"s_add_u32 s{sT1}, s{sT0}, {8*WROW}")
                a(f"buffer_load_dwordx4 {vr(vWOFF)}, s[{sW}:{sW+3}], s{sT1} offen lds")
            if p < 2:
                a(f"s_add_u32 s{sT0}, s{sT0}, s{sPSTR}")
        a("s_mov_b32 exec_hi, -1")
        for ks in range(2):
            for rt in range(2):
                reg = aX + ((b * 2 + ks) * 2 + rt) * 4
                a(f"buffer_load_dwordx4 {ar(reg,4)}, {vr(vX0 if rt == 0 else vX1)}, s[{sX}:{sX+3}], s{sXOFF} offen offset:{64*ks}")
            if halo:
                reg = aXH + (b * 2 + ks) * 4
                a(f"buffer_load_dwordx4 {ar(reg,4)}, {vr(vXH)}, s[{sX}:{sX+3}], s{sXOFF} offen offset:{64*ks}")
        a(f"""
        s_add_u32 s{sBP}, s{sBP}, 1
        s_cmp_eq_u32 s{sBP}, 7
        s_cselect_b32 s{sBP}, 0, s{sBP}
        """)

    def setup_lane_consts(isB):
        a(f"""
        v_lshrrev_b32 {vr(vT0)}, 4, {vr(vLANE)}        ; g
        v_and_b32 {vr(vT1)}, 1, {vr(vT0)}
        v_lshlrev_b32 {vr(vT1)}, 3, {vr(vT1)}
        v_lshrrev_b32 {vr(vT2)}, 1, {vr(vT0)}
        v_add_u32 {vr(vT1)}, {vr(vT1)}, {vr(vT2)}
        v_bfe_u32 {vr(vT2)}, {vr(vLANE)}, 2, 2          ; j
        v_lshlrev_b32 {vr(vT2)}, 1, {vr(vT2)}
        v_add_u32 {vr(vT1)}, {vr(vT1)}, {vr(vT2)}       ; pos
        v_mul_u32_u24 {vr(vT1)}, 112, {vr(vT1)}
        v_and_b32 {vr(vT2)}, 3, {vr(vLANE)}             ; c
        v_lshlrev_b32 {vr(vT3)}, 3, {vr(vT2)}
        v_add_u32 {vr(vTR)}, {vr(vT1)}, {vr(vT3)}
        v_add_u32 {vr(vTR3)}, {96}, {vr(vTR)}
        v_add_u32 {vr(vT3)}, {PS-16}, {vr(vTR)}
        v_cmp_lt_u32 vcc, 1, {vr(vT2)}
        s_nop 1
        v_cndmask_b32 {vr(vTR3)}, {vr(vTR3)}, {vr(vT3)}, vcc
        """)
        slotsz = (144 if isB else 128) * 64
        a(f"""
        v_and_b32 {vr(vT0)}, 15, {vr(vLANE)}            ; s_l
        s_lshl_b32 s{sT0}, s{sWAVE}, 5
        v_add_u32 {vr(vT1)}, s{sT0}, {vr(vT0)}
        v_lshlrev_b32 {vr(vPAD)}, 6, {vr(vT1)}
        v_lshrrev_b32 {vr(vT0)}, 2, {vr(vT0)}           ; R
        """)
        sigma_code(a, vT1, vT0, vT2)
        a(f"v_lshrrev_b32 {vr(vT0)}, 4, {vr(vLANE)}")
        for t in range(11):
            e = vEP + t
            a(f"""
            v_add_u32 {vr(vT2)}, {4*t}, {vr(vT0)}          ; u
            v_mul_u32_u24 {vr(vT3)}, 37, {vr(vT2)}
            v_lshrrev_b32 {vr(vT3)}, 8, {vr(vT3)}          ; slot
            v_mul_u32_u24 {vr(e)}, 7, {vr(vT3)}
            v_sub_u32 {vr(vT2)}, {vr(vT2)}, {vr(e)}        ; dq
            v_mul_u32_u24 {vr(vT3)}, {slotsz}, {vr(vT3)}
            v_add_u32 {vr(vT3)}, {vr(vT3)}, {vr(vPAD)}
            v_lshrrev_b32 {vr(e)}, 1, {vr(vT2)}
            v_xor_b32 {vr(e)}, {vr(e)}, {vr(vT1)}
            v_lshlrev_b32 {vr(e)}, 4, {vr(e)}
            v_add_u32 {vr(e)}, {vr(e)}, {vr(vT3)}
            v_and_b32 {vr(vT2)}, 1, {vr(vT2)}
            v_lshlrev_b32 {vr(vT2)}, 3, {vr(vT2)}
            v_add_u32 {vr(e)}, {vr(e)}, {vr(vT2)}
            """)

    def main_loop(halo):
        n = 12 if halo else 10
        waits = [4 * n, 4 * n, 4 * n, 3 * n, 2 * n, n, 0]
        steps = [(b, ks, t) for b in range(7) for ks in range(2) for t in range(11)]
        PF = NRING - 1
        def tileoff(t):
            if t == 3: return 0
            p = (4 * t) // 14
            return p * PS + (4 * t - 14 * p) * 8
        def emit_read(i):
            b, ks, t = steps[i]
            if ks == 0 and t == 0:
                a(f"s_waitcnt vmcnt({waits[b]})")
                a("s_barrier")
                if b == 0: issue_block(5, halo)
                if b == 1: issue_block(6, halo)
                if b > 0:
                    a(f"v_add_u32 {vr(vTR)}, {BS}, {vr(vTR)}")
                    a(f"v_add_u32 {vr(vTR3)}, {BS}, {vr(vTR3)}")
            va = vTR3 if t == 3 else vTR
            off = ks * 3584 + tileoff(t)
            w = vWF + (i % NRING) * 4
            a(f"ds_read_b64_tr_b16 {vr(w,2)}, {vr(va)} offset:{off}")
            a(f"ds_read_b64_tr_b16 {vr(w+2,2)}, {vr(va)} offset:{off+1792}")
        for i in range(min(PF, len(steps))):
            emit_read(i)
        for i, (b, ks, t) in enumerate(steps):
            if i + PF < len(steps):
                emit_read(i + PF)
                out = PF
            else:
                out = len(steps) - 1 - i
            a(f"s_waitcnt lgkmcnt({min(2*out,15)})")
            w = vWF + (i % NRING) * 4
            first = (b == 0 and ks == 0)
            for rt in range(2):
                acc = vACC + (rt * 11 + t) * 4
                xr = aX + ((b * 2 + ks) * 2 + rt) * 4
                c = "0" if first else vr(acc, 4)
                a(f"v_mfma_f32_16x16x32_bf16 {vr(acc,4)}, {vr(w,4)}, {ar(xr,4)}, {c}")
            if halo and t >= 3:
                acc = vACCH + (t - 3) * 4
                xr = aXH + (b * 2 + ks) * 4
                c = "0" if first else vr(acc, 4)
                a(f"v_mfma_f32_16x16x32_bf16 {vr(acc,4)}, {vr(w,4)}, {ar(xr,4)}, {c}")

    def stage_to_lds(isB):
        a("s_nop 7\ns_barrier")
        rowshift = 1024 if isB else 0
        for rt in range(2):
            for t in range(11):
                acc = vACC + (rt * 11 + t) * 4
                a(f"v_cvt_pk_bf16_f32 {vr(acc)}, {vr(acc)}, {vr(acc+1)}")
                a(f"v_cvt_pk_bf16_f32 {vr(acc+1)}, {vr(acc+2)}, {vr(acc+3)}")
                a(f"ds_write_b64 {vr(vEP+t)}, {vr(acc,2)} offset:{rowshift + rt*1024}")
        if isB:
            skip = a.newlabel("K1_nohalo")
            a(f"s_cmp_lg_u32 s{sWAVE}, 0\ns_cbranch_scc1 {skip}")
            for t in range(3, 11):
                acc = vACCH + (t - 3) * 4
                a(f"v_cvt_pk_bf16_f32 {vr(acc)}, {vr(acc)}, {vr(acc+1)}")
                a(f"v_cvt_pk_bf16_f32 {vr(acc+1)}, {vr(acc+2)}, {vr(acc+3)}")
                if t == 3:
                    pass
                a(f"ds_write_b64 {vr(vEP+t)}, {vr(acc,2)} offset:0")
            a(f"""
            v_and_b32 {vr(vT0)}, 15, {vr(vLANE)}
            v_lshrrev_b32 {vr(vT1)}, 2, {vr(vT0)}
            """)
            sigma_code(a, vT2, vT1, vT3)
            a(f"""
            v_xor_b32 {vr(vT2)}, 3, {vr(vT2)}
            v_lshlrev_b32 {vr(vT2)}, 4, {vr(vT2)}
            v_lshlrev_b32 {vr(vT0)}, 6, {vr(vT0)}
            v_add_u32 {vr(vT2)}, {vr(vT2)}, {vr(vT0)}
            v_lshrrev_b32 {vr(vT1)}, 4, {vr(vLANE)}
            v_add_u32 {vr(vT1)}, 2, {vr(vT1)}
            v_mul_u32_u24 {vr(vT3)}, {144*64}, {vr(vT1)}
            v_add_u32 {vr(vT2)}, {vr(vT2)}, {vr(vT3)}
            v_add_u32 {vr(vT2)}, 8, {vr(vT2)}
            v_mov_b32 {vr(vT0)}, 0x3f80
            v_cmp_lt_u32 vcc, 3, {vr(vT1)}          ; slot>=4 -> V
            s_nop 1
            v_cndmask_b32 {vr(vMISC)}, 0, {vr(vT0)}, vcc
            v_mov_b32 {vr(vMISC+1)}, 0
            ds_write_b64 {vr(vT2)}, {vr(vMISC,2)}
            """)
            a.label(skip)
        slotsz = (144 if isB else 128) * 64
        a(f"""
        v_and_b32 {vr(vT0)}, 31, {vr(vLANE)}
        v_bfe_u32 {vr(vT1)}, {vr(vLANE)}, 2, 2
        """)
        sigma_code(a, vT2, vT1, vT3)
        a(f"""
        v_xor_b32 {vr(vT2)}, 3, {vr(vT2)}
        v_lshlrev_b32 {vr(vT2)}, 4, {vr(vT2)}
        s_lshl_b32 s{sT0}, s{sWAVE}, 5
        v_add_u32 {vr(vT0)}, s{sT0}, {vr(vT0)}
        v_lshlrev_b32 {vr(vT0)}, 6, {vr(vT0)}
        v_add_u32 {vr(vT2)}, {vr(vT2)}, {vr(vT0)}
        v_lshrrev_b32 {vr(vT1)}, 5, {vr(vLANE)}       ; parity
        v_mul_u32_u24 {vr(vT3)}, {slotsz}, {vr(vT1)}
        v_add_u32 {vr(vT2)}, {vr(vT2)}, {vr(vT3)}
        v_add_u32 {vr(vT2)}, {8 + rowshift}, {vr(vT2)}
        v_mov_b32 {vr(vMISC+1)}, 0
        """)
        for i in range(3):
            if isB:
                val = 0 if i == 1 else 0x3f80
                a(f"v_mov_b32 {vr(vMISC)}, {val}")
            else:
                a(f"""
                s_mul_i32 s{sT0}, s{sCB}, 6
                s_add_u32 s{sT0}, s{sT0}, {2*i}
                v_add_u32 {vr(vT0)}, s{sT0}, {vr(vT1)}
                v_lshrrev_b32 {vr(vT0)}, 4, {vr(vT0)}
                v_mov_b32 {vr(vT3)}, 0x3f80
                v_cmp_ne_u32 vcc, 1, {vr(vT0)}
                s_nop 1
                v_cndmask_b32 {vr(vMISC)}, 0, {vr(vT3)}, vcc
                """)
            a(f"ds_write_b64 {vr(vT2)}, {vr(vMISC,2)} offset:{2*i*slotsz}")
        a("s_waitcnt lgkmcnt(0)\ns_barrier")

    LB = "K1_B"
    a(f"s_cmp_eq_u32 s{sBR}, 1\ns_cbranch_scc1 {LB}")
    for b in range(5): issue_block(b, False)
    setup_lane_consts(False)
    main_loop(False)
    stage_to_lds(False)
    a(f"""
    v_lshlrev_b32 {vr(vT0)}, 4, {vr(vLANE)}
    s_lshl_b32 s{sT0}, s{sWAVE}, 10
    v_add_u32 {vr(vT0)}, s{sT0}, {vr(vT0)}          ; lane*16 + w*1024
    s_mul_i32 s{sT1}, s{sCB}, {6*SLOT}
    s_lshl_b32 s{sT2}, s{sRB}, 13
    s_add_u32 s{sT1}, s{sT1}, s{sT2}
    """)
    for i in range(12):
        r = vACC + i * 4
        a(f"ds_read_b128 {vr(r,4)}, {vr(vT0)} offset:{i*4096}")
    for i in range(12):
        r = vACC + i * 4
        a(f"s_waitcnt lgkmcnt({11-i})")
        a(f"s_add_u32 s{sT2}, s{sT1}, {OFF_QKV + (i>>1)*SLOT + (i&1)*4096}")
        a(f"buffer_store_dwordx4 {vr(r,4)}, {vr(vT0)}, s[{sWS}:{sWS+3}], s{sT2} offen")
    a("s_branch K1_END")

    a.label(LB)
    for b in range(5): issue_block(b, True)
    setup_lane_consts(True)
    main_loop(True)
    stage_to_lds(True)
    SL = 144 * 64
    vQA, vVA0, vVA1, vOA = 168, 169, 170, 171
    vMa, vMb, vMa0 = 172, 176, 180
    vQ, vKa, vKb = 184, 188, 192
    vSa, vSb = 196, 200
    vV0, vV1 = 204, 208
    vO0, vO1 = 212, 216
    vM, vU0, vU1, vRI = 220, 221, 222, 223
    vC = 224
    a(f"""
    v_and_b32 {vr(vT0)}, 15, {vr(vLANE)}
    v_lshrrev_b32 {vr(vT1)}, 2, {vr(vT0)}
    """)
    sigma_code(a, vT2, vT1, vT3)
    a(f"""
    v_lshrrev_b32 {vr(vT1)}, 4, {vr(vLANE)}        ; g
    v_xor_b32 {vr(vT2)}, {vr(vT2)}, {vr(vT1)}
    v_lshlrev_b32 {vr(vT2)}, 4, {vr(vT2)}
    s_lshl_b32 s{sT0}, s{sWAVE}, 5
    v_add_u32 {vr(vT3)}, s{sT0}, {vr(vT0)}
    v_lshlrev_b32 {vr(vT3)}, 6, {vr(vT3)}
    v_add_u32 {vr(vQA)}, {vr(vT2)}, {vr(vT3)}
    """)
    sigma_code(a, vT2, vT1, vT3)
    a(f"""
    v_bfe_u32 {vr(vT3)}, {vr(vLANE)}, 1, 1          ; c>>1
    v_xor_b32 {vr(vT2)}, {vr(vT2)}, {vr(vT3)}
    v_lshlrev_b32 {vr(vT2)}, 4, {vr(vT2)}
    v_and_b32 {vr(vT3)}, 1, {vr(vLANE)}
    v_lshlrev_b32 {vr(vT3)}, 3, {vr(vT3)}
    v_add_u32 {vr(vT2)}, {vr(vT2)}, {vr(vT3)}
    v_lshlrev_b32 {vr(vT3)}, 2, {vr(vT1)}            ; 4g
    v_bfe_u32 {vr(vVA0)}, {vr(vLANE)}, 2, 2
    v_add_u32 {vr(vT3)}, {vr(vT3)}, {vr(vVA0)}
    s_lshl_b32 s{sT0}, s{sWAVE}, 5
    v_add_u32 {vr(vT3)}, s{sT0}, {vr(vT3)}
    v_lshlrev_b32 {vr(vT3)}, 6, {vr(vT3)}
    v_add_u32 {vr(vVA0)}, {vr(vT2)}, {vr(vT3)}
    v_xor_b32 {vr(vVA1)}, 32, {vr(vVA0)}
    """)
    a(f"""
    v_and_b32 {vr(vT0)}, 15, {vr(vLANE)}
    v_lshlrev_b32 {vr(vT2)}, 2, {vr(vT1)}
    v_sub_u32 {vr(vT0)}, {vr(vT0)}, {vr(vT2)}        ; q - 4g
    v_mov_b32 {vr(vT3)}, {NEG_INF}
    """)
    for r in range(4):
        a(f"""
        v_subrev_u32 {vr(vT2)}, {r}, {vr(vT0)}
        v_and_b32 {vr(vU0)}, 0xfffffff1, {vr(vT2)}
        v_cmp_eq_u32 vcc, 0, {vr(vU0)}
        s_nop 1
        v_cndmask_b32 {vr(vMb+r)}, {vr(vT3)}, 0, vcc
        v_add_u32 {vr(vT2)}, 16, {vr(vT2)}
        v_and_b32 {vr(vU0)}, 0xfffffff1, {vr(vT2)}
        v_cmp_eq_u32 vcc, 0, {vr(vU0)}
        s_nop 1
        v_cndmask_b32 {vr(vMa+r)}, {vr(vT3)}, 0, vcc
        v_mov_b32 {vr(vMa0+r)}, {vr(vMa+r)}
        """)
    lab = a.newlabel("K1_m0")
    a(f"""
    s_or_b32 s{sT0}, s{sRB}, s{sWAVE}
    s_cmp_lg_u32 s{sT0}, 0
    s_cbranch_scc1 {lab}
    """)
    for r in range(4): a(f"v_mov_b32 {vr(vMa0+r)}, {vr(vT3)}")
    a.label(lab)
    a(f"""
    v_and_b32 {vr(vT0)}, 15, {vr(vLANE)}
    s_lshl_b32 s{sT0}, s{sRB}, 7
    s_lshl_b32 s{sT1}, s{sWAVE}, 5
    s_add_u32 s{sT0}, s{sT0}, s{sT1}
    v_add_u32 {vr(vT0)}, s{sT0}, {vr(vT0)}
    v_lshlrev_b32 {vr(vT0)}, 6, {vr(vT0)}
    v_and_b32 {vr(vT2)}, 1, {vr(vT1)}
    v_lshlrev_b32 {vr(vT2)}, 5, {vr(vT2)}
    v_lshrrev_b32 {vr(vT3)}, 1, {vr(vT1)}
    v_lshlrev_b32 {vr(vT3)}, 4, {vr(vT3)}
    v_add3_u32 {vr(vOA)}, {vr(vT0)}, {vr(vT2)}, {vr(vT3)}
    s_lshl_b32 s{sT0}, s{sCB}, 1
    s_add_u32 s{sT0}, s{sT0}, 16
    s_mul_i32 s{sT0}, s{sT0}, {SLOT}
    s_add_u32 s{sT0}, s{sT0}, {OFF_O}
    s_mov_b32 s{sT1}, {f2u(SCALE_LOG2E)}
    """)
    for hh in range(2):
        for rt in range(2):
            T = 1 + rt
            a(f"ds_read_b128 {vr(vQ,4)}, {vr(vQA)} offset:{(0+hh)*SL + T*1024}")
            a(f"ds_read_b128 {vr(vKa,4)}, {vr(vQA)} offset:{(2+hh)*SL + (T-1)*1024}")
            a(f"ds_read_b128 {vr(vKb,4)}, {vr(vQA)} offset:{(2+hh)*SL + T*1024}")
            for dt, (va, vv) in enumerate(((vVA0, vV0), (vVA1, vV1))):
                a(f"ds_read_b64_tr_b16 {vr(vv,2)}, {vr(va)} offset:{(4+hh)*SL + (T-1)*1024}")
                a(f"ds_read_b64_tr_b16 {vr(vv+2,2)}, {vr(va)} offset:{(4+hh)*SL + T*1024}")
            a("s_waitcnt lgkmcnt(4)")
            ma = vMa0 if rt == 0 else vMa
            a(f"v_mfma_f32_16x16x32_bf16 {vr(vSa,4)}, {vr(vKa,4)}, {vr(vQ,4)}, {vr(ma,4)}")
            a(f"v_mfma_f32_16x16x32_bf16 {vr(vSb,4)}, {vr(vKb,4)}, {vr(vQ,4)}, {vr(vMb,4)}")
            a("s_nop 7")
            a(f"""
            v_max3_f32 {vr(vM)}, {vr(vSa)}, {vr(vSa+1)}, {vr(vSa+2)}
            v_max3_f32 {vr(vM)}, {vr(vM)}, {vr(vSa+3)}, {vr(vSb)}
            v_max3_f32 {vr(vM)}, {vr(vM)}, {vr(vSb+1)}, {vr(vSb+2)}
            v_max_f32 {vr(vM)}, {vr(vM)}, {vr(vSb+3)}
            v_mov_b32 {vr(vU0)}, {vr(vM)}
            s_nop 1
            v_permlane32_swap_b32 {vr(vM)}, {vr(vU0)}
            s_nop 0
            v_max_f32 {vr(vM)}, {vr(vM)}, {vr(vU0)}
            v_mov_b32 {vr(vU0)}, {vr(vM)}
            s_nop 1
            v_permlane16_swap_b32 {vr(vM)}, {vr(vU0)}
            s_nop 0
            v_max_f32 {vr(vM)}, {vr(vM)}, {vr(vU0)}
            v_mul_f32 {vr(vM)}, s{sT1}, {vr(vM)}
            """)
            for r in range(8):
                a(f"v_fma_f32 {vr(vSa+r)}, {vr(vSa+r)}, s{sT1}, -{vr(vM)}")
            for r in range(8):
                a(f"v_exp_f32 {vr(vSa+r)}, {vr(vSa+r)}")
            a("s_nop 0")
            for j in range(4):
                a(f"v_cvt_pk_bf16_f32 {vr(vSa+j)}, {vr(vSa+2*j)}, {vr(vSa+2*j+1)}")
            a("s_waitcnt lgkmcnt(0)\ns_nop 1")
            a(f"v_mfma_f32_16x16x32_bf16 {vr(vO0,4)}, {vr(vV0,4)}, {vr(vSa,4)}, 0")
            a(f"v_mfma_f32_16x16x32_bf16 {vr(vO1,4)}, {vr(vV1,4)}, {vr(vSa,4)}, 0")
            a("s_nop 7")
            a(f"""
            v_mov_b32 {vr(vU0)}, {vr(vO1)}
            v_mov_b32 {vr(vU1)}, {vr(vO1)}
            s_nop 1
            v_permlane32_swap_b32 {vr(vU0)}, {vr(vU1)}
            v_mov_b32 {vr(vU0)}, {vr(vU1)}
            s_nop 1
            v_permlane16_swap_b32 {vr(vU0)}, {vr(vU1)}
            s_nop 0
            v_rcp_f32 {vr(vRI)}, {vr(vU1)}
            v_cmp_gt_u32 vcc, 48, {vr(vLANE)}
            s_nop 1
            v_cndmask_b32 {vr(vU0)}, 0, {vr(vRI)}, vcc
            """)
            for r in range(4):
                a(f"v_mul_f32 {vr(vO0+r)}, {vr(vO0+r)}, {vr(vRI)}")
                a(f"v_mul_f32 {vr(vO1+r)}, {vr(vO1+r)}, {vr(vU0)}")
            a(f"""
            v_cvt_pk_bf16_f32 {vr(vO0)}, {vr(vO0)}, {vr(vO0+1)}
            v_cvt_pk_bf16_f32 {vr(vO0+1)}, {vr(vO0+2)}, {vr(vO0+3)}
            v_cvt_pk_bf16_f32 {vr(vO0+2)}, {vr(vO1)}, {vr(vO1+1)}
            v_cvt_pk_bf16_f32 {vr(vO0+3)}, {vr(vO1+2)}, {vr(vO1+3)}
            s_nop 1
            v_permlane16_swap_b32 {vr(vO0)}, {vr(vO0+2)}
            v_permlane16_swap_b32 {vr(vO0+1)}, {vr(vO0+3)}
            s_add_u32 s{sT2}, s{sT0}, {hh*SLOT + rt*1024}
            s_nop 0
            buffer_store_dwordx4 {vr(vO0,4)}, {vr(vOA)}, s[{sWS}:{sWS+3}], s{sT2} offen
            s_nop 1
            """)
    a.label(LEND)
    a("s_endpgm")


def gen_k2(a):
    sQ, sK, sV, sO = 4, 8, 12, 16
    sWAVE, sHD, sI, sT0, sT1, sT2, sC = 20, 21, 22, 23, 24, 25, 26
    KB, VB = 0, 24576
    vLANE, vT0, vT1, vT2, vT3 = 1, 2, 3, 4, 5
    vKA0, vKA1, vVA0, vVA1, vDM, vOA = 6, 7, 8, 9, 10, 11
    vQ = 12
    vKF = 20
    vVF = 36
    vO = 52
    vM, vU0, vU1, vMC = 68, 69, 70, 72
    vS = 76
    LEND = "K2_END"
    a(f"s_cmp_ge_u32 s2, 256\ns_cbranch_scc1 {LEND}")
    a("s_load_dwordx2 s[30:31], s[0:1], 72")
    a(f"""
    v_and_b32 {vr(vLANE)}, 63, v0
    v_lshrrev_b32 {vr(vT0)}, 6, v0
    s_nop 0
    v_readfirstlane_b32 s{sWAVE}, {vr(vT0)}
    s_and_b32 s{sT0}, s2, 7
    s_lshr_b32 s{sT1}, s2, 3
    s_lshr_b32 s{sHD}, s{sT1}, 4
    s_lshl_b32 s{sT0}, s{sT0}, 1
    s_add_u32 s{sHD}, s{sHD}, s{sT0}      ; head
    s_and_b32 s{sI}, s{sT1}, 15
    s_waitcnt lgkmcnt(0)
    s_mul_i32 s{sT0}, s{sHD}, {SLOT}
    """)
    for srd, part in ((sQ, 0), (sK, 1), (sV, 2)):
        a(f"s_add_u32 s{sT1}, s{sT0}, {OFF_QKV + part*16*SLOT}")
        a(f"s_add_u32 s{srd}, s30, s{sT1}\ns_addc_u32 s{srd+1}, s31, 0\ns_mov_b32 s{srd+2}, {SLOT}\ns_mov_b32 s{srd+3}, 0x20000")
    a(f"s_add_u32 s{sT1}, s{sT0}, {OFF_O}")
    a(f"s_add_u32 s{sO}, s30, s{sT1}\ns_addc_u32 s{sO+1}, s31, 0\ns_mov_b32 s{sO+2}, {SLOT}\ns_mov_b32 s{sO+3}, 0x20000")
    a(f"""
    s_lshl_b32 s{sT0}, s{sI}, 13
    s_sub_u32 s{sT0}, s{sT0}, 16384
    s_lshl_b32 s{sT1}, s{sWAVE}, 10
    s_add_u32 s{sT0}, s{sT0}, s{sT1}
    v_lshlrev_b32 {vr(vDM)}, 4, {vr(vLANE)}
    v_add_u32 {vr(vDM)}, s{sT0}, {vr(vDM)}
    """)
    for j in range(6):
        a(f"s_add_u32 s{sT2}, s{sT1}, {KB + j*4096}\ns_mov_b32 m0, s{sT2}\ns_nop 0")
        a(f"buffer_load_dwordx4 {vr(vDM)}, s[{sK}:{sK+3}], 0 offen lds")
        a(f"s_add_u32 s{sT2}, s{sT1}, {VB + j*4096}\ns_mov_b32 m0, s{sT2}\ns_nop 0")
        a(f"buffer_load_dwordx4 {vr(vDM)}, s[{sV}:{sV+3}], 0 offen lds")
        if j < 5: a(f"v_add_u32 {vr(vDM)}, 4096, {vr(vDM)}")
    a(f"""
    v_and_b32 {vr(vT0)}, 31, {vr(vLANE)}
    v_bfe_u32 {vr(vT1)}, {vr(vLANE)}, 2, 2
    """)
    sigma_code(a, vT2, vT1, vT3)
    a(f"""
    v_lshrrev_b32 {vr(vT1)}, 5, {vr(vLANE)}          ; hh
    v_xor_b32 {vr(vT2)}, {vr(vT2)}, {vr(vT1)}
    v_lshlrev_b32 {vr(vT2)}, 4, {vr(vT2)}             ; (hh^sigma)*16
    s_lshl_b32 s{sT0}, s{sWAVE}, 5
    v_add_u32 {vr(vT3)}, s{sT0}, {vr(vT0)}
    v_lshlrev_b32 {vr(vT3)}, 6, {vr(vT3)}             ; (32w + key)*64
    v_add_u32 {vr(vKA0)}, {vr(vT2)}, {vr(vT3)}
    v_xor_b32 {vr(vKA1)}, 32, {vr(vKA0)}
    s_lshl_b32 s{sT0}, s{sI}, 13
    v_add_u32 {vr(vT0)}, s{sT0}, {vr(vKA0)}
    v_add_u32 {vr(vT1)}, s{sT0}, {vr(vKA1)}
    buffer_load_dwordx4 {vr(vQ,4)}, {vr(vT0)}, s[{sQ}:{sQ+3}], 0 offen
    buffer_load_dwordx4 {vr(vQ+4,4)}, {vr(vT1)}, s[{sQ}:{sQ+3}], 0 offen
    """)
    for idx, (va, radd) in enumerate(((vVA0, 0), (vVA1, 2))):
        a(f"""
        v_lshrrev_b32 {vr(vT0)}, 5, {vr(vLANE)}          ; hh
        v_add_u32 {vr(vT1)}, {radd}, {vr(vT0)}
        """)
        sigma_code(a, vT2, vT1, vT3)
        a(f"""
        v_bfe_u32 {vr(vT3)}, {vr(vLANE)}, 4, 1
        v_lshlrev_b32 {vr(vT3)}, 1, {vr(vT3)}
        v_xor_b32 {vr(vT2)}, {vr(vT2)}, {vr(vT3)}
        v_bfe_u32 {vr(vT3)}, {vr(vLANE)}, 1, 1
        v_xor_b32 {vr(vT2)}, {vr(vT2)}, {vr(vT3)}
        v_lshlrev_b32 {vr(vT2)}, 4, {vr(vT2)}
        v_and_b32 {vr(vT3)}, 1, {vr(vLANE)}
        v_lshlrev_b32 {vr(vT3)}, 3, {vr(vT3)}
        v_add_u32 {vr(vT2)}, {vr(vT2)}, {vr(vT3)}
        v_lshlrev_b32 {vr(vT1)}, 2, {vr(vT1)}
        v_bfe_u32 {vr(vT3)}, {vr(vLANE)}, 2, 2
        v_add_u32 {vr(vT1)}, {vr(vT1)}, {vr(vT3)}
        s_lshl_b32 s{sT0}, s{sWAVE}, 5
        v_add_u32 {vr(vT1)}, s{sT0}, {vr(vT1)}
        v_lshlrev_b32 {vr(vT1)}, 6, {vr(vT1)}
        v_add_u32 {vr(va)}, {vr(vT2)}, {vr(vT1)}
        v_add_u32 {vr(va)}, {VB}, {vr(va)}
        """)
    a(f"""
    v_and_b32 {vr(vT0)}, 31, {vr(vLANE)}
    v_lshrrev_b32 {vr(vT1)}, 5, {vr(vLANE)}
    v_lshlrev_b32 {vr(vT1)}, 2, {vr(vT1)}
    v_sub_u32 {vr(vT0)}, {vr(vT0)}, {vr(vT1)}
    v_mov_b32 {vr(vT3)}, {NEG_INF}
    """)
    for r in range(16):
        kr = 8 * (r >> 2) + (r & 3)
        a(f"""
        v_cmp_gt_i32 vcc, {kr}, {vr(vT0)}
        s_nop 1
        v_cndmask_b32 {vr(vS+r)}, {vr(vT3)}, 0, vcc
        v_cndmask_b32 {vr(vS+128+r)}, 0, {vr(vT3)}, vcc
        """)
    a(f"""
    s_mov_b32 s{sC}, {f2u(SCALE_LOG2E)}
    s_mov_b32 s{sC+1}, {f2u(SCALE_LOG2E)}
    """)
    a("s_waitcnt vmcnt(0)")
    lab = a.newlabel("K2_nopatch")
    a(f"s_cmp_ge_u32 s{sI}, 2\ns_cbranch_scc1 {lab}")
    a(f"v_lshrrev_b32 {vr(vT0)}, 4, {vr(vLANE)}")
    sigma_code(a, vT1, vT0, vT2)
    a(f"""
    v_xor_b32 {vr(vT1)}, 3, {vr(vT1)}
    v_and_b32 {vr(vT2)}, 3, {vr(vLANE)}
    v_cmp_eq_u32 vcc, {vr(vT1)}, {vr(vT2)}
    v_lshlrev_b32 {vr(vT0)}, 4, {vr(vLANE)}
    s_lshl_b32 s{sT1}, s{sWAVE}, 10
    v_add_u32 {vr(vT0)}, s{sT1}, {vr(vT0)}
    v_mov_b32 {vr(vT2)}, 0xf14a
    s_and_saveexec_b64 s[28:29], vcc
    """)
    for j in range(4):
        if j == 2:
            a(f"s_cmp_eq_u32 s{sI}, 1\ns_cbranch_scc1 {lab}_r")
        a(f"ds_write_b32 {vr(vT0)}, {vr(vT2)} offset:{KB + j*4096 + 8}")
    a.label(lab + "_r")
    a("s_mov_b64 exec, s[28:29]\ns_waitcnt lgkmcnt(0)")
    a.label(lab)
    a("s_barrier")
    steps = [(kt, ks) for kt in range(9) for ks in range(2)]
    def kread(i):
        kt, ks = steps[i]
        a(f"ds_read_b128 {vr(vKF + (i%4)*4,4)}, {vr(vKA0 if ks == 0 else vKA1)} offset:{KB + kt*2048}")
    for i in range(3): kread(i)
    for i, (kt, ks) in enumerate(steps):
        if i + 3 < len(steps): kread(i + 3)
        a(f"s_waitcnt lgkmcnt({min(3, len(steps)-1-i)})")
        sreg = vS + kt * 16
        if ks == 0:
            c = vr(sreg, 16) if kt in (0, 8) else "0"
        else:
            c = vr(sreg, 16)
        a(f"v_mfma_f32_32x32x16_bf16 {vr(sreg,16)}, {vr(vKF+(i%4)*4,4)}, {vr(vQ+4*ks,4)}, {c}")
    a("s_nop 15")
    a(f"v_max3_f32 {vr(vM)}, {vr(vS)}, {vr(vS+1)}, {vr(vS+2)}")
    r = 3
    while r + 1 < 144:
        a(f"v_max3_f32 {vr(vM)}, {vr(vM)}, {vr(vS+r)}, {vr(vS+r+1)}")
        r += 2
    a(f"v_max_f32 {vr(vM)}, {vr(vM)}, {vr(vS+143)}")
    a(f"""
    v_mov_b32 {vr(vU0)}, {vr(vM)}
    s_nop 1
    v_permlane32_swap_b32 {vr(vM)}, {vr(vU0)}
    s_nop 0
    v_max_f32 {vr(vM)}, {vr(vM)}, {vr(vU0)}
    v_mul_f32 {vr(vMC)}, s{sC}, {vr(vM)}
    """)
    vsteps = [(kt, u) for kt in range(9) for u in range(2)]
    def vread(i):
        kt, u = vsteps[i]
        w = vVF + (i % 4) * 4
        a(f"ds_read_b64_tr_b16 {vr(w,2)}, {vr(vVA0)} offset:{kt*2048 + u*1024}")
        a(f"ds_read_b64_tr_b16 {vr(w+2,2)}, {vr(vVA1)} offset:{kt*2048 + u*1024}")
    for i in range(3): vread(i)
    for kt in range(9):
        sreg = vS + kt * 16
        for j in range(8):
            a(f"v_pk_fma_f32 {vr(sreg+2*j,2)}, {vr(sreg+2*j,2)}, s[{sC}:{sC+1}], {vr(vMC,2)} op_sel_hi:[1,0,0] neg_lo:[0,0,1] neg_hi:[0,0,1]")
        for r in range(16):
            a(f"v_exp_f32 {vr(sreg+r)}, {vr(sreg+r)}")
        a("s_nop 0")
        for j in range(8):
            a(f"v_cvt_pk_bf16_f32 {vr(sreg+j)}, {vr(sreg+2*j)}, {vr(sreg+2*j+1)}")
        for u in range(2):
            i = kt * 2 + u
            if i + 3 < len(vsteps): vread(i + 3)
            a(f"s_waitcnt lgkmcnt({2*min(3, len(vsteps)-1-i)})")
            c = "0" if i == 0 else vr(vO, 16)
            a(f"v_mfma_f32_32x32x16_bf16 {vr(vO,16)}, {vr(vVF+(i%4)*4,4)}, {vr(sreg+4*u,4)}, {c}")
    a("s_nop 15")
    a(f"""
    v_mov_b32 {vr(vU0)}, {vr(vO+12)}
    v_mov_b32 {vr(vU1)}, {vr(vO+12)}
    s_nop 1
    v_permlane32_swap_b32 {vr(vU0)}, {vr(vU1)}
    s_nop 0
    v_rcp_f32 {vr(vU1)}, {vr(vU1)}
    v_cmp_gt_u32 vcc, 32, {vr(vLANE)}
    s_nop 1
    v_cndmask_b32 {vr(vU0)}, 0, {vr(vU1)}, vcc
    """)
    for r in range(16):
        a(f"v_mul_f32 {vr(vO+r)}, {vr(vO+r)}, {vr(vU1 if r < 12 else vU0)}")
    for j in range(8):
        a(f"v_cvt_pk_bf16_f32 {vr(vO+j)}, {vr(vO+2*j)}, {vr(vO+2*j+1)}")
    a(f"""
    s_nop 1
    v_permlane32_swap_b32 {vr(vO)}, {vr(vO+2)}
    v_permlane32_swap_b32 {vr(vO+1)}, {vr(vO+3)}
    v_permlane32_swap_b32 {vr(vO+4)}, {vr(vO+6)}
    v_permlane32_swap_b32 {vr(vO+5)}, {vr(vO+7)}
    s_nop 1
    v_permlane16_swap_b32 {vr(vO)}, {vr(vO+4)}
    v_permlane16_swap_b32 {vr(vO+1)}, {vr(vO+5)}
    v_permlane16_swap_b32 {vr(vO+2)}, {vr(vO+6)}
    v_permlane16_swap_b32 {vr(vO+3)}, {vr(vO+7)}
    """)
    a(f"""
    v_and_b32 {vr(vT0)}, 15, {vr(vLANE)}
    s_lshl_b32 s{sT0}, s{sI}, 7
    s_lshl_b32 s{sT1}, s{sWAVE}, 5
    s_add_u32 s{sT0}, s{sT0}, s{sT1}
    v_add_u32 {vr(vT0)}, s{sT0}, {vr(vT0)}
    v_lshlrev_b32 {vr(vT0)}, 6, {vr(vT0)}
    v_bfe_u32 {vr(vT1)}, {vr(vLANE)}, 4, 1
    v_lshlrev_b32 {vr(vT1)}, 5, {vr(vT1)}
    v_bfe_u32 {vr(vT2)}, {vr(vLANE)}, 5, 1
    v_lshlrev_b32 {vr(vT2)}, 4, {vr(vT2)}
    v_add3_u32 {vr(vOA)}, {vr(vT0)}, {vr(vT1)}, {vr(vT2)}
    buffer_store_dwordx4 {vr(vO,4)}, {vr(vOA)}, s[{sO}:{sO+3}], 0 offen
    buffer_store_dwordx4 {vr(vO+4,4)}, {vr(vOA)}, s[{sO}:{sO+3}], 0 offen offset:1024
    """)
    a.label(LEND)
    a("s_endpgm")

def gen_k3(a):
    sX, sWA, sWB, sO, sOUT, sG = 4, 8, 12, 16, 20, 24
    sWAVE, sRB, sCB, sT0, sT1, sT2, sM = 28, 29, 30, 31, 32, 33, 34
    vLANE, vT0, vT1, vT2, vT3 = 1, 2, 3, 4, 5
    vWOFF, vTRA, vTRB, vOL, vXL, vGL, vOUT = 6, 7, 8, 9, 10, 11, 12
    vWF = 16
    NRING = 6
    vAA, vAB = 40, 56
    vG = 72
    vGW = 76
    aO = 0
    aX = 128
    LEND = "K3_END"
    a(f"s_cmp_ge_u32 s2, 256\ns_cbranch_scc1 {LEND}")
    a("""
    s_load_dwordx2 s[40:41], s[0:1], 0
    s_load_dwordx2 s[42:43], s[0:1], 16
    s_load_dwordx2 s[44:45], s[0:1], 40
    s_load_dwordx2 s[46:47], s[0:1], 48
    s_load_dwordx2 s[48:49], s[0:1], 56
    s_load_dwordx2 s[50:51], s[0:1], 72
    """)
    a(f"""
    v_and_b32 {vr(vLANE)}, 63, v0
    v_lshrrev_b32 {vr(vT0)}, 6, v0
    s_nop 0
    v_readfirstlane_b32 s{sWAVE}, {vr(vT0)}
    s_and_b32 s{sT0}, s2, 7
    s_lshr_b32 s{sT1}, s2, 3
    s_lshl_b32 s{sRB}, s{sT0}, 2
    s_lshr_b32 s{sT2}, s{sT1}, 3
    s_add_u32 s{sRB}, s{sRB}, s{sT2}
    s_and_b32 s{sCB}, s{sT1}, 7
    """)
    a(f"""
    v_mul_u32_u24 {vr(vT0)}, 37, {vr(vLANE)}
    v_lshrrev_b32 {vr(vT0)}, 8, {vr(vT0)}
    v_mul_u32_u24 {vr(vT1)}, 7, {vr(vT0)}
    v_sub_u32 {vr(vT1)}, {vr(vLANE)}, {vr(vT1)}
    v_and_b32 {vr(vT2)}, 1, {vr(vT0)}
    v_lshlrev_b32 {vr(vT2)}, 4, {vr(vT2)}
    v_lshrrev_b32 {vr(vT0)}, 1, {vr(vT0)}
    v_add_u32 {vr(vT2)}, {vr(vT2)}, {vr(vT0)}
    v_mul_u32_u24 {vr(vT2)}, 896, {vr(vT2)}
    v_lshlrev_b32 {vr(vT1)}, 4, {vr(vT1)}
    v_add_u32 {vr(vWOFF)}, {vr(vT2)}, {vr(vT1)}
    """)
    a("s_waitcnt lgkmcnt(0)")
    make_srd(a, sX, 40, S * XROW)
    make_srd(a, sWA, 42, D * 896)
    make_srd(a, sWB, 44, D * 896)
    make_srd(a, sG, 46, 896)
    make_srd(a, sOUT, 48, S * 896)
    a(f"s_add_u32 s{sO}, s50, {OFF_O}\ns_addc_u32 s{sO+1}, s51, 0\ns_mov_b32 s{sO+2}, {32*SLOT}\ns_mov_b32 s{sO+3}, 0x20000")
    a(f"""
    s_and_b32 s{sT0}, s{sWAVE}, 1
    s_lshl_b32 s{sT0}, s{sT0}, 3
    s_lshr_b32 s{sT1}, s{sWAVE}, 1
    s_lshl_b32 s{sT1}, s{sT1}, 2
    s_add_u32 s{sT0}, s{sT0}, s{sT1}             ; ku(w) = 8*(w&1) + 4*(w>>1)
    s_mul_i32 s{sT0}, s{sT0}, 896
    s_mul_i32 s{sT1}, s{sCB}, 112
    s_add_u32 s{sT0}, s{sT0}, s{sT1}
    v_add_u32 {vr(vWOFF)}, s{sT0}, {vr(vWOFF)}
    s_mul_i32 s{sM}, s{sWAVE}, 896
    s_mov_b32 exec_hi, 0x00ffffff
    """)
    for h in range(16):
        for br in range(2):
            srd = sWB if br == 1 else sWA
            a(f"s_add_u32 s{sT0}, s{sM}, {(br*16+h)*3584}\ns_mov_b32 m0, s{sT0}\ns_nop 0")
            a(f"buffer_load_dwordx4 {vr(vWOFF)}, s[{srd}:{srd+3}], 0 offen lds")
        if h < 15: a(f"v_add_u32 {vr(vWOFF)}, {28*896}, {vr(vWOFF)}")
    a("s_mov_b32 exec_hi, -1")
    a(f"""
    v_and_b32 {vr(vT0)}, 15, {vr(vLANE)}
    s_lshl_b32 s{sT0}, s{sRB}, 6
    s_lshl_b32 s{sT1}, s{sWAVE}, 4
    s_add_u32 s{sT0}, s{sT0}, s{sT1}
    v_add_u32 {vr(vT0)}, s{sT0}, {vr(vT0)}       ; row
    v_lshrrev_b32 {vr(vT1)}, 4, {vr(vLANE)}
    v_lshlrev_b32 {vr(vGL)}, 4, {vr(vT1)}         ; g*16
    v_lshlrev_b32 {vr(vT2)}, 6, {vr(vT0)}
    v_add_u32 {vr(vOL)}, {vr(vT2)}, {vr(vGL)}
    v_mul_u32_u24 {vr(vT2)}, 896, {vr(vT0)}
    v_add_u32 {vr(vXL)}, {vr(vT2)}, {vr(vGL)}
    v_and_b32 {vr(vT3)}, 1, {vr(vT1)}
    v_lshlrev_b32 {vr(vT3)}, 5, {vr(vT3)}
    v_lshrrev_b32 {vr(vT1)}, 1, {vr(vT1)}
    v_lshlrev_b32 {vr(vT1)}, 4, {vr(vT1)}
    v_add3_u32 {vr(vOUT)}, {vr(vT2)}, {vr(vT3)}, {vr(vT1)}
    s_mul_i32 s{sT1}, s{sCB}, 112
    v_add_u32 {vr(vOUT)}, s{sT1}, {vr(vOUT)}
    """)
    for ks in range(14):
        a(f"buffer_load_dwordx4 {ar(aX+ks*4,4)}, {vr(vXL)}, s[{sX}:{sX+3}], 0 offen offset:{64*ks}")
        a(f"buffer_load_dwordx4 {vr(vGW+ks*4,4)}, {vr(vGL)}, s[{sG}:{sG+3}], 0 offen offset:{64*ks}")
    a(f"""
    v_lshrrev_b32 {vr(vT0)}, 4, {vr(vLANE)}
    v_and_b32 {vr(vT1)}, 1, {vr(vT0)}
    v_lshlrev_b32 {vr(vT1)}, 3, {vr(vT1)}
    v_lshrrev_b32 {vr(vT2)}, 1, {vr(vT0)}
    v_add_u32 {vr(vT1)}, {vr(vT1)}, {vr(vT2)}
    v_bfe_u32 {vr(vT2)}, {vr(vLANE)}, 2, 2
    v_lshlrev_b32 {vr(vT2)}, 1, {vr(vT2)}
    v_add_u32 {vr(vT1)}, {vr(vT1)}, {vr(vT2)}
    v_mul_u32_u24 {vr(vT1)}, 112, {vr(vT1)}
    v_and_b32 {vr(vT2)}, 3, {vr(vLANE)}
    v_lshlrev_b32 {vr(vT3)}, 3, {vr(vT2)}
    v_add_u32 {vr(vTRA)}, {vr(vT1)}, {vr(vT3)}
    v_add_u32 {vr(vTRB)}, {16*3584}, {vr(vTRA)}
    """)
    a("s_waitcnt vmcnt(0)")
    for ks in range(14):
        c = "0" if ks == 0 else vr(vG, 4)
        a(f"v_mfma_f32_16x16x32_bf16 {vr(vG,4)}, {vr(vGW+ks*4,4)}, {ar(aX+ks*4,4)}, {c}")
    order = [(1, h) for h in range(16)] + [(0, h) for h in range(16)]
    for i, (br, h) in enumerate(order):
        a(f"s_mov_b32 s{sT0}, {(br*16+h)*SLOT}")
        a(f"buffer_load_dwordx4 {ar(aO+i*4,4)}, {vr(vOL)}, s[{sO}:{sO+3}], s{sT0} offen")
    a("s_barrier")
    steps = [(i, t) for i in range(32) for t in range(4)]
    PF = NRING - 1
    def rd(n):
        i, t = steps[n]
        br, h = order[i]
        va = vTRB if br == 1 else vTRA
        w = vWF + (n % NRING) * 4
        a(f"ds_read_b64_tr_b16 {vr(w,2)}, {vr(va)} offset:{h*3584 + 32*t}")
        a(f"ds_read_b64_tr_b16 {vr(w+2,2)}, {vr(va)} offset:{h*3584 + 32*t + 1792}")
    for n in range(PF): rd(n)
    for n, (i, t) in enumerate(steps):
        if n + PF < len(steps): rd(n + PF)
        if t == 0: a(f"s_waitcnt vmcnt({31-i})")
        a(f"s_waitcnt lgkmcnt({2*min(PF, len(steps)-1-n)})")
        br, h = order[i]
        acc = (vAB if br == 1 else vAA) + t * 4
        c = "0" if h == 0 else vr(acc, 4)
        a(f"v_mfma_f32_16x16x32_bf16 {vr(acc,4)}, {vr(vWF+(n%NRING)*4,4)}, {ar(aO+i*4,4)}, {c}")
    a("s_nop 7")
    a(f"""
    v_mul_f32 {vr(vG)}, {f2u(-1.4426950408889634)}, {vr(vG)}
    v_exp_f32 {vr(vG)}, {vr(vG)}
    s_nop 0
    v_add_f32 {vr(vG)}, 1.0, {vr(vG)}
    v_rcp_f32 {vr(vG)}, {vr(vG)}
    s_nop 0
    """)
    for t in range(4):
        for r in range(4):
            x, y = vAA + t * 4 + r, vAB + t * 4 + r
            a(f"v_sub_f32 {vr(x)}, {vr(x)}, {vr(y)}")
            a(f"v_fma_f32 {vr(x)}, {vr(x)}, {vr(vG)}, {vr(y)}")
    for p in range(2):
        x, y = vAA + (2 * p) * 4, vAA + (2 * p + 1) * 4
        d = vAB + p * 4
        a(f"""
        v_cvt_pk_bf16_f32 {vr(d)}, {vr(x)}, {vr(x+1)}
        v_cvt_pk_bf16_f32 {vr(d+1)}, {vr(x+2)}, {vr(x+3)}
        v_cvt_pk_bf16_f32 {vr(d+2)}, {vr(y)}, {vr(y+1)}
        v_cvt_pk_bf16_f32 {vr(d+3)}, {vr(y+2)}, {vr(y+3)}
        s_nop 1
        v_permlane16_swap_b32 {vr(d)}, {vr(d+2)}
        v_permlane16_swap_b32 {vr(d+1)}, {vr(d+3)}
        """)
    a(f"""
    s_nop 0
    buffer_store_dwordx4 {vr(vAB,4)}, {vr(vOUT)}, s[{sOUT}:{sOUT+3}], 0 offen
    s_mov_b32 exec_hi, 0x0000ffff
    buffer_store_dwordx4 {vr(vAB+4,4)}, {vr(vOUT)}, s[{sOUT}:{sOUT+3}], 0 offen offset:64
    """)
    a.label(LEND)
    a("s_endpgm")

def build(path):
    hdr = open("cdna_kernels/" + NAME + ".s.ref").read().split("\n")
    comments = [l for l in hdr if l.startswith(";") and "@launch" not in l and "Override launch" not in l and "grid=ceil" not in l]
    k1, k2, k3 = "k1_kernel", "k2_kernel", "k3_kernel"
    out = "\n".join(comments) + "\n"
    out += f"; @launch kernel={k1} grid=(256,1,1) block=(256,1,1) lds=163840\n"
    out += f"; @launch kernel={k2} grid=(256,1,1) block=(256,1,1) lds=49152\n"
    out += f"; @launch kernel={k3} grid=(256,1,1) block=(256,1,1) lds=115200\n"
    out += '.amdgcn_target "amdgcn-amd-amdhsa--gfx950"\n.text\n'
    for name, fn in ((k1, gen_k1), (k2, gen_k2), (k3, gen_k3)):
        a = Asm(); fn(a)
        out += kernel_header(name) + a.text()
    out += '.section .rodata,"a"\n'
    out += kernel_desc(k1, 512, 64, 256) + kernel_desc(k2, 256, 64, 256) + kernel_desc(k3, 512, 64, 256)
    open(path, "w").write(out)

if __name__ == "__main__":
    build(sys.argv[1] if len(sys.argv) > 1 else "v1.s")
```

```python
from asmlib import *
import sys, struct

NAME = "gated_mix__sliding_block__sliding_local_dilated__prompt"
KNAME = NAME + "_kernel"
S, D, H, DH = 2048, 448, 16, 28
WROW, XROW = 2688, 896
SLOT = S * 64
OFF_QKV = 0
OFF_O = 48 * SLOT
OFF_F = OFF_O + 32 * SLOT
F1, F2A, F2B = 0, 2048, 4096
OFF_ST = OFF_F + 8192
WS_USED = OFF_ST + 256 * 256
PS = 7184
BS = 3 * PS
NEG_INF = 0xff800000
SCALE_LOG2E = (DH ** -0.5) * 1.4426950408889634
KB, VB, WOB = 0, 24576, 49152

def f2u(f): return struct.unpack("<I", struct.pack("<f", f))[0]

class G:
    stamps = False
    prefetch = True
    spin_max = 1 << 22

sNONCE = 3
pX, pWA, pWOA, pWB, pWOB, pGW, pOUT, pDBG, pWS = 64, 66, 68, 72, 74, 76, 78, 80, 82
sWAVE, sXCD, sIDX = 56, 57, 58
sST = 84
vLANE = 1

def sigma_code(a, vdst, vR, vtmp):
    a(f"""
    v_and_b32 {vr(vdst)}, 1, {vr(vR)}
    v_lshlrev_b32 {vr(vdst)}, 1, {vr(vdst)}
    v_lshrrev_b32 {vr(vtmp)}, 1, {vr(vR)}
    v_mul_u32_u24 {vr(vtmp)}, 3, {vr(vtmp)}
    v_xor_b32 {vr(vdst)}, {vr(vdst)}, {vr(vtmp)}
    """)

def make_srd(a, s, base_pair, size, off=None):
    if off is None:
        a(f"s_mov_b32 s{s}, s{base_pair}\ns_mov_b32 s{s+1}, s{base_pair+1}")
    else:
        a(f"s_add_u32 s{s}, s{base_pair}, {off}\ns_addc_u32 s{s+1}, s{base_pair+1}, 0")
    a(f"s_mov_b32 s{s+2}, {size}\ns_mov_b32 s{s+3}, 0x20000")

STAMP_NAMES = []
def stamp(a, name):
    if G.stamps:
        if name not in STAMP_NAMES: STAMP_NAMES.append(name)
        k = STAMP_NAMES.index(name) + 2
        a(f"s_memtime s[48:49]\ns_waitcnt lgkmcnt(0)\nv_writelane_b32 v254, s48, {k}")

def get_nonce(a, vtmp, first_loaded):
    L = a.newlabel("nonce"); Ld = L + "_done"
    if first_loaded:
        a(f"v_readfirstlane_b32 s{sNONCE}, {vr(vtmp)}")
        a(f"s_cmp_lg_u32 s{sNONCE}, 0\ns_cbranch_scc1 {Ld}")
    a(f"s_mov_b32 s62, 0")
    a.label(L)
    a(f"""
    v_mov_b32 {vr(vtmp)}, 0
    global_load_dword {vr(vtmp)}, {vr(vtmp)}, s[{pDBG}:{pDBG+1}] sc1
    s_waitcnt vmcnt(0)
    v_readfirstlane_b32 s{sNONCE}, {vr(vtmp)}
    s_add_u32 s62, s62, 1
    s_cmp_gt_u32 s62, {G.spin_max}
    s_cbranch_scc1 {Ld}
    s_cmp_eq_u32 s{sNONCE}, 0
    s_cbranch_scc1 {L}
    """)
    a.label(Ld)

def publish_flag(a, sOff, vt0, vt1):
    L = a.newlabel("pub")
    a(f"""
    s_waitcnt vmcnt(0)
    s_barrier
    s_cmp_lg_u32 s{sWAVE}, 0
    s_cbranch_scc1 {L}
    s_add_u32 s60, s{pWS}, {OFF_F}
    s_addc_u32 s61, s{pWS+1}, 0
    v_mov_b32 {vr(vt0)}, s{sOff}
    v_mov_b32 {vr(vt1)}, s{sNONCE}
    s_mov_b64 exec, 1
    global_store_dword {vr(vt0)}, {vr(vt1)}, s[60:61] sc1
    s_mov_b64 exec, -1
    """)
    a.label(L)

def poll_flags(a, vOff, nlanes, vt):
    L = a.newlabel("poll"); Ld = L + "_done"; Ls = L + "_skip"
    hi = (1 << nlanes) - 1
    a(f"""
    s_cmp_lg_u32 s{sWAVE}, 0
    s_cbranch_scc1 {Ls}
    s_add_u32 s60, s{pWS}, {OFF_F}
    s_addc_u32 s61, s{pWS+1}, 0
    s_mov_b32 exec_lo, {hi & 0xffffffff:#x}
    s_mov_b32 exec_hi, {hi >> 32:#x}
    s_mov_b32 s62, 0
    """)
    a.label(L)
    a(f"""
    global_load_dword {vr(vt)}, {vr(vOff)}, s[60:61] sc1
    s_add_u32 s62, s62, 1
    s_waitcnt vmcnt(0)
    v_cmp_ne_u32 vcc, s{sNONCE}, {vr(vt)}
    s_cmp_gt_u32 s62, {G.spin_max}
    s_cbranch_scc1 {Ld}
    s_cbranch_vccnz {L}
    """)
    a.label(Ld)
    a("s_mov_b64 exec, -1")
    a.label(Ls)
    a("s_barrier")

def wo_dma(a, vW, vT0, vT1, vT2, sCB3, sT0, sT1, sM, sWOA, sWOB):
    a(f"""
    v_mul_u32_u24 {vr(vT0)}, 37, {vr(vLANE)}
    v_lshrrev_b32 {vr(vT0)}, 8, {vr(vT0)}
    v_mul_u32_u24 {vr(vT1)}, 7, {vr(vT0)}
    v_sub_u32 {vr(vT1)}, {vr(vLANE)}, {vr(vT1)}
    v_and_b32 {vr(vT2)}, 1, {vr(vT0)}
    v_lshlrev_b32 {vr(vT2)}, 4, {vr(vT2)}
    v_lshrrev_b32 {vr(vT0)}, 1, {vr(vT0)}
    v_add_u32 {vr(vT2)}, {vr(vT2)}, {vr(vT0)}
    v_mul_u32_u24 {vr(vT2)}, 896, {vr(vT2)}
    v_lshlrev_b32 {vr(vT1)}, 4, {vr(vT1)}
    v_add_u32 {vr(vW)}, {vr(vT2)}, {vr(vT1)}
    s_and_b32 s{sT0}, s{sWAVE}, 1
    s_lshl_b32 s{sT0}, s{sT0}, 3
    s_lshr_b32 s{sT1}, s{sWAVE}, 1
    s_lshl_b32 s{sT1}, s{sT1}, 2
    s_add_u32 s{sT0}, s{sT0}, s{sT1}
    s_mul_i32 s{sT0}, s{sT0}, 896
    s_and_b32 s{sT1}, s{sIDX}, 7
    s_mul_i32 s{sT1}, s{sT1}, 112
    s_add_u32 s{sT0}, s{sT0}, s{sT1}
    v_add_u32 {vr(vW)}, s{sT0}, {vr(vW)}
    s_mul_i32 s{sM}, s{sWAVE}, 896
    """)
    make_srd(a, sWOA, pWOA, D * 896)
    make_srd(a, sWOB, pWOB, D * 896)
    a("s_mov_b32 exec_hi, 0x00ffffff")
    for h in range(16):
        for br in (1, 0):
            srd = sWOB if br == 1 else sWOA
            a(f"s_add_u32 s{sT0}, s{sM}, {WOB + (br*16+h)*3584}\ns_mov_b32 m0, s{sT0}\ns_nop 0")
            a(f"buffer_load_dwordx4 {vr(vW)}, s[{srd}:{srd+3}], 0 offen lds")
        if h < 15: a(f"v_add_u32 {vr(vW)}, {28*896}, {vr(vW)}")
    a("s_mov_b32 exec_hi, -1")

def gen_p1(a):
    sX, sW, sWS = 4, 8, 12
    sRB, sCB, sBR = 17, 18, 19
    sBP, sWOFF, sPSTR, sT0, sT1, sT2, sXOFF, sM0 = 20, 21, 22, 23, 24, 25, 26, 27
    sLDSW = 28
    vWOFF, vX0, vX1, vXH = 2, 3, 4, 5
    vTR, vTR3 = 6, 7
    vT0, vT1, vT2, vT3 = 8, 9, 10, 11
    vEP = 12
    vPAD = 23
    vWF = 24
    NRING = 6
    vACC = 48
    vACCH = 136
    vMISC = 168
    vNON = 230
    aX = 0
    aXH = 112

    a(f"""
    s_lshr_b32 s{sBR}, s{sIDX}, 4
    s_lshr_b32 s{sRB}, s{sXCD}, 1
    s_lshl_b32 s{sRB}, s{sRB}, 2
    s_lshr_b32 s{sT2}, s{sIDX}, 2
    s_and_b32 s{sT2}, s{sT2}, 3
    s_add_u32 s{sRB}, s{sRB}, s{sT2}
    s_and_b32 s{sCB}, s{sXCD}, 1
    s_lshl_b32 s{sCB}, s{sCB}, 2
    s_and_b32 s{sT2}, s{sIDX}, 3
    s_add_u32 s{sCB}, s{sCB}, s{sT2}
    s_and_b32 s{sBP}, s{sIDX}, 15
    s_cmp_ge_u32 s{sBP}, 7
    s_cselect_b32 s{sT2}, 7, 0
    s_sub_u32 s{sBP}, s{sBP}, s{sT2}
    s_cmp_ge_u32 s{sBP}, 7
    s_cselect_b32 s{sT2}, 7, 0
    s_sub_u32 s{sBP}, s{sBP}, s{sT2}
    """)
    a(f"""
    v_mul_u32_u24 {vr(vT0)}, 37, {vr(vLANE)}
    v_lshrrev_b32 {vr(vT0)}, 8, {vr(vT0)}
    v_mul_u32_u24 {vr(vT1)}, 7, {vr(vT0)}
    v_sub_u32 {vr(vT1)}, {vr(vLANE)}, {vr(vT1)}
    v_and_b32 {vr(vT2)}, 1, {vr(vT0)}
    v_lshlrev_b32 {vr(vT2)}, 4, {vr(vT2)}
    v_lshrrev_b32 {vr(vT0)}, 1, {vr(vT0)}
    v_add_u32 {vr(vT2)}, {vr(vT2)}, {vr(vT0)}
    v_mul_u32_u24 {vr(vT2)}, {WROW}, {vr(vT2)}
    v_lshlrev_b32 {vr(vT1)}, 4, {vr(vT1)}
    v_add_u32 {vr(vWOFF)}, {vr(vT2)}, {vr(vT1)}
    """)
    a(f"""
    s_lshl_b32 s{sT0}, s{sRB}, 7
    s_lshl_b32 s{sT1}, s{sWAVE}, 5
    s_add_u32 s{sT0}, s{sT0}, s{sT1}
    v_and_b32 {vr(vT0)}, 15, {vr(vLANE)}
    v_lshrrev_b32 {vr(vT1)}, 4, {vr(vLANE)}
    v_lshlrev_b32 {vr(vT1)}, 4, {vr(vT1)}
    v_add_u32 {vr(vT2)}, s{sT0}, {vr(vT0)}
    v_mul_u32_u24 {vr(vT2)}, {XROW}, {vr(vT2)}
    v_add_u32 {vr(vX0)}, {vr(vT2)}, {vr(vT1)}
    v_add_u32 {vr(vX1)}, {16*XROW}, {vr(vX0)}
    s_lshl_b32 s{sT0}, s{sRB}, 7
    s_sub_u32 s{sT0}, s{sT0}, 16
    v_add_u32 {vr(vT2)}, s{sT0}, {vr(vT0)}
    v_mul_i32_i24 {vr(vT2)}, {XROW}, {vr(vT2)}
    v_add_u32 {vr(vXH)}, {vr(vT2)}, {vr(vT1)}
    """)
    a("s_waitcnt lgkmcnt(0)")
    stamp(a, "karg")
    make_srd(a, sX, pX, S * XROW)
    a(f"""
    s_cmp_eq_u32 s{sBR}, 0
    s_cselect_b32 s{sW}, s{pWA}, s{pWB}
    s_cselect_b32 s{sW+1}, s{pWA+1}, s{pWB+1}
    s_mov_b32 s{sW+2}, {D*WROW}
    s_mov_b32 s{sW+3}, 0x20000
    s_mov_b32 s{sT1}, 896
    s_cselect_b32 s{sPSTR}, 112, s{sT1}
    s_mov_b32 s{sT1}, 112
    s_cselect_b32 s{sT0}, 336, s{sT1}
    s_mul_i32 s{sWOFF}, s{sCB}, s{sT0}
    """)
    a(f"""
    s_lshr_b32 s{sT0}, s{sWAVE}, 1
    s_lshl_b32 s{sT0}, s{sT0}, 5
    s_and_b32 s{sT1}, s{sWAVE}, 1
    s_lshl_b32 s{sT1}, s{sT1}, 2
    s_add_u32 s{sT0}, s{sT0}, s{sT1}
    s_mul_i32 s{sT0}, s{sT0}, {WROW}
    s_add_u32 s{sWOFF}, s{sWOFF}, s{sT0}
    s_mul_i32 s{sLDSW}, s{sWAVE}, {2*896}
    """)

    def issue_block(b, halo):
        a(f"""
        s_mul_i32 s{sT0}, s{sBP}, {64*WROW}
        s_add_u32 s{sT0}, s{sT0}, s{sWOFF}
        s_lshl_b32 s{sXOFF}, s{sBP}, 7
        s_mov_b32 exec_hi, 0x00ffffff
        """)
        for p in range(3):
            for e in range(2):
                a(f"s_add_u32 s{sM0}, s{sLDSW}, {b*BS + p*PS + e*896}")
                a(f"s_mov_b32 m0, s{sM0}")
                if e == 0: a(f"s_mov_b32 s{sT1}, s{sT0}")
                else: a(f"s_add_u32 s{sT1}, s{sT0}, {8*WROW}")
                a(f"buffer_load_dwordx4 {vr(vWOFF)}, s[{sW}:{sW+3}], s{sT1} offen lds")
            if p < 2: a(f"s_add_u32 s{sT0}, s{sT0}, s{sPSTR}")
        a("s_mov_b32 exec_hi, -1")
        for ks in range(2):
            for rt in range(2):
                reg = aX + ((b * 2 + ks) * 2 + rt) * 4
                a(f"buffer_load_dwordx4 {ar(reg,4)}, {vr(vX0 if rt == 0 else vX1)}, s[{sX}:{sX+3}], s{sXOFF} offen offset:{64*ks}")
            if halo:
                reg = aXH + (b * 2 + ks) * 4
                a(f"buffer_load_dwordx4 {ar(reg,4)}, {vr(vXH)}, s[{sX}:{sX+3}], s{sXOFF} offen offset:{64*ks}")
        a(f"""
        s_add_u32 s{sBP}, s{sBP}, 1
        s_cmp_eq_u32 s{sBP}, 7
        s_cselect_b32 s{sBP}, 0, s{sBP}
        """)

    def setup_lane_consts(isB):
        a(f"""
        v_lshrrev_b32 {vr(vT0)}, 4, {vr(vLANE)}
        v_and_b32 {vr(vT1)}, 1, {vr(vT0)}
        v_lshlrev_b32 {vr(vT1)}, 3, {vr(vT1)}
        v_lshrrev_b32 {vr(vT2)}, 1, {vr(vT0)}
        v_add_u32 {vr(vT1)}, {vr(vT1)}, {vr(vT2)}
        v_bfe_u32 {vr(vT2)}, {vr(vLANE)}, 2, 2
        v_lshlrev_b32 {vr(vT2)}, 1, {vr(vT2)}
        v_add_u32 {vr(vT1)}, {vr(vT1)}, {vr(vT2)}
        v_mul_u32_u24 {vr(vT1)}, 112, {vr(vT1)}
        v_and_b32 {vr(vT2)}, 3, {vr(vLANE)}
        v_lshlrev_b32 {vr(vT3)}, 3, {vr(vT2)}
        v_add_u32 {vr(vTR)}, {vr(vT1)}, {vr(vT3)}
        v_add_u32 {vr(vTR3)}, {96}, {vr(vTR)}
        v_add_u32 {vr(vT3)}, {PS-16}, {vr(vTR)}
        v_cmp_lt_u32 vcc, 1, {vr(vT2)}
        s_nop 1
        v_cndmask_b32 {vr(vTR3)}, {vr(vTR3)}, {vr(vT3)}, vcc
        """)
        slotsz = (144 if isB else 128) * 64
        a(f"""
        v_and_b32 {vr(vT0)}, 15, {vr(vLANE)}
        s_lshl_b32 s{sT0}, s{sWAVE}, 5
        v_add_u32 {vr(vT1)}, s{sT0}, {vr(vT0)}
        v_lshlrev_b32 {vr(vPAD)}, 6, {vr(vT1)}
        v_lshrrev_b32 {vr(vT0)}, 2, {vr(vT0)}
        """)
        sigma_code(a, vT1, vT0, vT2)
        a(f"v_lshrrev_b32 {vr(vT0)}, 4, {vr(vLANE)}")
        for t in range(11):
            e = vEP + t
            a(f"""
            v_add_u32 {vr(vT2)}, {4*t}, {vr(vT0)}
            v_mul_u32_u24 {vr(vT3)}, 37, {vr(vT2)}
            v_lshrrev_b32 {vr(vT3)}, 8, {vr(vT3)}
            v_mul_u32_u24 {vr(e)}, 7, {vr(vT3)}
            v_sub_u32 {vr(vT2)}, {vr(vT2)}, {vr(e)}
            v_mul_u32_u24 {vr(vT3)}, {slotsz}, {vr(vT3)}
            v_add_u32 {vr(vT3)}, {vr(vT3)}, {vr(vPAD)}
            v_lshrrev_b32 {vr(e)}, 1, {vr(vT2)}
            v_xor_b32 {vr(e)}, {vr(e)}, {vr(vT1)}
            v_lshlrev_b32 {vr(e)}, 4, {vr(e)}
            v_add_u32 {vr(e)}, {vr(e)}, {vr(vT3)}
            v_and_b32 {vr(vT2)}, 1, {vr(vT2)}
            v_lshlrev_b32 {vr(vT2)}, 3, {vr(vT2)}
            v_add_u32 {vr(e)}, {vr(e)}, {vr(vT2)}
            """)

    def main_loop(halo):
        n = 12 if halo else 10
        waits = [4 * n, 4 * n, 4 * n + 1, 3 * n + 1, 2 * n + 1, n + 1, 0]
        steps = [(b, ks, t) for b in range(7) for ks in range(2) for t in range(11)]
        PF = NRING - 1
        def tileoff(t):
            if t == 3: return 0
            p = (4 * t) // 14
            return p * PS + (4 * t - 14 * p) * 8
        def emit_read(i):
            b, ks, t = steps[i]
            if ks == 0 and t == 0:
                a(f"s_waitcnt vmcnt({waits[b]})")
                a("s_barrier")
                stamp(a, f"blk{b}")
                if b == 0: issue_block(5, halo)
                if b == 1:
                    issue_block(6, halo)
                    a(f"v_mov_b32 {vr(vNON)}, 0")
                    a(f"global_load_dword {vr(vNON)}, {vr(vNON)}, s[{pDBG}:{pDBG+1}] sc1")
                if b > 0:
                    a(f"v_add_u32 {vr(vTR)}, {BS}, {vr(vTR)}")
                    a(f"v_add_u32 {vr(vTR3)}, {BS}, {vr(vTR3)}")
            va = vTR3 if t == 3 else vTR
            off = ks * 3584 + tileoff(t)
            w = vWF + (i % NRING) * 4
            a(f"ds_read_b64_tr_b16 {vr(w,2)}, {vr(va)} offset:{off}")
            a(f"ds_read_b64_tr_b16 {vr(w+2,2)}, {vr(va)} offset:{off+1792}")
        for i in range(min(PF, len(steps))): emit_read(i)
        for i, (b, ks, t) in enumerate(steps):
            if i + PF < len(steps):
                emit_read(i + PF); out = PF
            else:
                out = len(steps) - 1 - i
            a(f"s_waitcnt lgkmcnt({min(2*out,15)})")
            w = vWF + (i % NRING) * 4
            first = (b == 0 and ks == 0)
            for rt in range(2):
                acc = vACC + (rt * 11 + t) * 4
                xr = aX + ((b * 2 + ks) * 2 + rt) * 4
                c = "0" if first else vr(acc, 4)
                a(f"v_mfma_f32_16x16x32_bf16 {vr(acc,4)}, {vr(w,4)}, {ar(xr,4)}, {c}")
            if halo and t >= 3:
                acc = vACCH + (t - 3) * 4
                xr = aXH + (b * 2 + ks) * 4
                c = "0" if first else vr(acc, 4)
                a(f"v_mfma_f32_16x16x32_bf16 {vr(acc,4)}, {vr(w,4)}, {ar(xr,4)}, {c}")

    def stage_to_lds(isB):
        a("s_nop 7\ns_barrier")
        rowshift = 1024 if isB else 0
        for rt in range(2):
            for t in range(11):
                acc = vACC + (rt * 11 + t) * 4
                a(f"v_cvt_pk_bf16_f32 {vr(acc)}, {vr(acc)}, {vr(acc+1)}")
                a(f"v_cvt_pk_bf16_f32 {vr(acc+1)}, {vr(acc+2)}, {vr(acc+3)}")
                a(f"ds_write_b64 {vr(vEP+t)}, {vr(acc,2)} offset:{rowshift + rt*1024}")
        if isB:
            skip = a.newlabel("P1_nohalo")
            a(f"s_cmp_lg_u32 s{sWAVE}, 0\ns_cbranch_scc1 {skip}")
            for t in range(3, 11):
                acc = vACCH + (t - 3) * 4
                a(f"v_cvt_pk_bf16_f32 {vr(acc)}, {vr(acc)}, {vr(acc+1)}")
                a(f"v_cvt_pk_bf16_f32 {vr(acc+1)}, {vr(acc+2)}, {vr(acc+3)}")
                a(f"ds_write_b64 {vr(vEP+t)}, {vr(acc,2)} offset:0")
            a(f"""
            v_and_b32 {vr(vT0)}, 15, {vr(vLANE)}
            v_lshrrev_b32 {vr(vT1)}, 2, {vr(vT0)}
            """)
            sigma_code(a, vT2, vT1, vT3)
            a(f"""
            v_xor_b32 {vr(vT2)}, 3, {vr(vT2)}
            v_lshlrev_b32 {vr(vT2)}, 4, {vr(vT2)}
            v_lshlrev_b32 {vr(vT0)}, 6, {vr(vT0)}
            v_add_u32 {vr(vT2)}, {vr(vT2)}, {vr(vT0)}
            v_lshrrev_b32 {vr(vT1)}, 4, {vr(vLANE)}
            v_add_u32 {vr(vT1)}, 2, {vr(vT1)}
            v_mul_u32_u24 {vr(vT3)}, {144*64}, {vr(vT1)}
            v_add_u32 {vr(vT2)}, {vr(vT2)}, {vr(vT3)}
            v_add_u32 {vr(vT2)}, 8, {vr(vT2)}
            v_mov_b32 {vr(vT0)}, 0x3f80
            v_cmp_lt_u32 vcc, 3, {vr(vT1)}
            s_nop 1
            v_cndmask_b32 {vr(vMISC)}, 0, {vr(vT0)}, vcc
            v_mov_b32 {vr(vMISC+1)}, 0
            ds_write_b64 {vr(vT2)}, {vr(vMISC,2)}
            """)
            a.label(skip)
        slotsz = (144 if isB else 128) * 64
        a(f"""
        v_and_b32 {vr(vT0)}, 31, {vr(vLANE)}
        v_bfe_u32 {vr(vT1)}, {vr(vLANE)}, 2, 2
        """)
        sigma_code(a, vT2, vT1, vT3)
        a(f"""
        v_xor_b32 {vr(vT2)}, 3, {vr(vT2)}
        v_lshlrev_b32 {vr(vT2)}, 4, {vr(vT2)}
        s_lshl_b32 s{sT0}, s{sWAVE}, 5
        v_add_u32 {vr(vT0)}, s{sT0}, {vr(vT0)}
        v_lshlrev_b32 {vr(vT0)}, 6, {vr(vT0)}
        v_add_u32 {vr(vT2)}, {vr(vT2)}, {vr(vT0)}
        v_lshrrev_b32 {vr(vT1)}, 5, {vr(vLANE)}
        v_mul_u32_u24 {vr(vT3)}, {slotsz}, {vr(vT1)}
        v_add_u32 {vr(vT2)}, {vr(vT2)}, {vr(vT3)}
        v_add_u32 {vr(vT2)}, {8 + rowshift}, {vr(vT2)}
        v_mov_b32 {vr(vMISC+1)}, 0
        """)
        for i in range(3):
            if isB:
                val = 0 if i == 1 else 0x3f80
                a(f"v_mov_b32 {vr(vMISC)}, {val}")
            else:
                a(f"""
                s_mul_i32 s{sT0}, s{sCB}, 6
                s_add_u32 s{sT0}, s{sT0}, {2*i}
                v_add_u32 {vr(vT0)}, s{sT0}, {vr(vT1)}
                v_lshrrev_b32 {vr(vT0)}, 4, {vr(vT0)}
                v_mov_b32 {vr(vT3)}, 0x3f80
                v_cmp_ne_u32 vcc, 1, {vr(vT0)}
                s_nop 1
                v_cndmask_b32 {vr(vMISC)}, 0, {vr(vT3)}, vcc
                """)
            a(f"ds_write_b64 {vr(vT2)}, {vr(vMISC,2)} offset:{2*i*slotsz}")
        a("s_waitcnt lgkmcnt(0)\ns_barrier")
        stamp(a, "staged")

    LB, LP2 = "P1_B", "P2_START"
    make_srd(a, sWS, pWS, WS_USED)
    a(f"s_cmp_eq_u32 s{sBR}, 1\ns_cbranch_scc1 {LB}")
    for b in range(5): issue_block(b, False)
    stamp(a, "iss5")
    setup_lane_consts(False)
    stamp(a, "issued")
    main_loop(False)
    stamp(a, "gemm")
    stage_to_lds(False)
    a(f"""
    v_lshlrev_b32 {vr(vT0)}, 4, {vr(vLANE)}
    s_lshl_b32 s{sT0}, s{sWAVE}, 10
    v_add_u32 {vr(vT0)}, s{sT0}, {vr(vT0)}
    s_mul_i32 s{sT1}, s{sCB}, {6*SLOT}
    s_lshl_b32 s{sT2}, s{sRB}, 13
    s_add_u32 s{sT1}, s{sT1}, s{sT2}
    """)
    for i in range(12):
        r = vACC + i * 4
        a(f"ds_read_b128 {vr(r,4)}, {vr(vT0)} offset:{i*4096}")
    for i in range(12):
        r = vACC + i * 4
        a(f"s_waitcnt lgkmcnt({11-i})")
        a(f"s_add_u32 s{sT2}, s{sT1}, {OFF_QKV + (i>>1)*SLOT + (i&1)*4096}")
        a(f"buffer_store_dwordx4 {vr(r,4)}, {vr(vT0)}, s[{sWS}:{sWS+3}], s{sT2} offen sc1")
    get_nonce(a, vNON, True)
    a(f"s_lshl_b32 s{sT0}, s{sRB}, 7\ns_lshl_b32 s{sT1}, s{sCB}, 2\ns_add_u32 s{sT0}, s{sT0}, s{sT1}\ns_add_u32 s{sT0}, s{sT0}, {F1}")
    publish_flag(a, sT0, vT0, vT1)
    stamp(a, "pub1")
    a(f"s_mov_b32 s59, 1")
    a(f"s_cmp_eq_u32 s{sWAVE}, 0\ns_cbranch_scc1 {LP2}")
    wo_dma(a, vT3, vT0, vT1, vT2, None, sT0, sT1, sT2, 40, 44)
    a(f"s_mov_b32 s59, 0")
    a(f"s_branch {LP2}")

    a.label(LB)
    for b in range(5): issue_block(b, True)
    stamp(a, "iss5")
    setup_lane_consts(True)
    stamp(a, "issued")
    main_loop(True)
    stamp(a, "gemm")
    stage_to_lds(True)
    get_nonce(a, vNON, True)
    SL = 144 * 64
    vQA, vVA0, vVA1, vOA = 168, 169, 170, 171
    vMa, vMb, vMa0 = 172, 176, 180
    vQ, vKa, vKb = 184, 188, 192
    vSa, vSb = 196, 200
    vV0, vV1 = 204, 208
    vO0, vO1 = 212, 216
    vM, vU0, vU1, vRI = 220, 221, 222, 223
    a(f"""
    v_and_b32 {vr(vT0)}, 15, {vr(vLANE)}
    v_lshrrev_b32 {vr(vT1)}, 2, {vr(vT0)}
    """)
    sigma_code(a, vT2, vT1, vT3)
    a(f"""
    v_lshrrev_b32 {vr(vT1)}, 4, {vr(vLANE)}
    v_xor_b32 {vr(vT2)}, {vr(vT2)}, {vr(vT1)}
    v_lshlrev_b32 {vr(vT2)}, 4, {vr(vT2)}
    s_lshl_b32 s{sT0}, s{sWAVE}, 5
    v_add_u32 {vr(vT3)}, s{sT0}, {vr(vT0)}
    v_lshlrev_b32 {vr(vT3)}, 6, {vr(vT3)}
    v_add_u32 {vr(vQA)}, {vr(vT2)}, {vr(vT3)}
    """)
    sigma_code(a, vT2, vT1, vT3)
    a(f"""
    v_bfe_u32 {vr(vT3)}, {vr(vLANE)}, 1, 1
    v_xor_b32 {vr(vT2)}, {vr(vT2)}, {vr(vT3)}
    v_lshlrev_b32 {vr(vT2)}, 4, {vr(vT2)}
    v_and_b32 {vr(vT3)}, 1, {vr(vLANE)}
    v_lshlrev_b32 {vr(vT3)}, 3, {vr(vT3)}
    v_add_u32 {vr(vT2)}, {vr(vT2)}, {vr(vT3)}
    v_lshlrev_b32 {vr(vT3)}, 2, {vr(vT1)}
    v_bfe_u32 {vr(vVA0)}, {vr(vLANE)}, 2, 2
    v_add_u32 {vr(vT3)}, {vr(vT3)}, {vr(vVA0)}
    s_lshl_b32 s{sT0}, s{sWAVE}, 5
    v_add_u32 {vr(vT3)}, s{sT0}, {vr(vT3)}
    v_lshlrev_b32 {vr(vT3)}, 6, {vr(vT3)}
    v_add_u32 {vr(vVA0)}, {vr(vT2)}, {vr(vT3)}
    v_xor_b32 {vr(vVA1)}, 32, {vr(vVA0)}
    """)
    a(f"""
    v_and_b32 {vr(vT0)}, 15, {vr(vLANE)}
    v_lshlrev_b32 {vr(vT2)}, 2, {vr(vT1)}
    v_sub_u32 {vr(vT0)}, {vr(vT0)}, {vr(vT2)}
    v_mov_b32 {vr(vT3)}, {NEG_INF}
    """)
    for r in range(4):
        a(f"""
        v_subrev_u32 {vr(vT2)}, {r}, {vr(vT0)}
        v_and_b32 {vr(vU0)}, 0xfffffff1, {vr(vT2)}
        v_cmp_eq_u32 vcc, 0, {vr(vU0)}
        s_nop 1
        v_cndmask_b32 {vr(vMb+r)}, {vr(vT3)}, 0, vcc
        v_add_u32 {vr(vT2)}, 16, {vr(vT2)}
        v_and_b32 {vr(vU0)}, 0xfffffff1, {vr(vT2)}
        v_cmp_eq_u32 vcc, 0, {vr(vU0)}
        s_nop 1
        v_cndmask_b32 {vr(vMa+r)}, {vr(vT3)}, 0, vcc
        v_mov_b32 {vr(vMa0+r)}, {vr(vMa+r)}
        """)
    lab = a.newlabel("P1_m0")
    a(f"s_or_b32 s{sT0}, s{sRB}, s{sWAVE}\ns_cmp_lg_u32 s{sT0}, 0\ns_cbranch_scc1 {lab}")
    for r in range(4): a(f"v_mov_b32 {vr(vMa0+r)}, {vr(vT3)}")
    a.label(lab)
    a(f"""
    v_and_b32 {vr(vT0)}, 15, {vr(vLANE)}
    s_lshl_b32 s{sT0}, s{sRB}, 7
    s_lshl_b32 s{sT1}, s{sWAVE}, 5
    s_add_u32 s{sT0}, s{sT0}, s{sT1}
    v_add_u32 {vr(vT0)}, s{sT0}, {vr(vT0)}
    v_lshlrev_b32 {vr(vT0)}, 6, {vr(vT0)}
    v_and_b32 {vr(vT2)}, 1, {vr(vT1)}
    v_lshlrev_b32 {vr(vT2)}, 5, {vr(vT2)}
    v_lshrrev_b32 {vr(vT3)}, 1, {vr(vT1)}
    v_lshlrev_b32 {vr(vT3)}, 4, {vr(vT3)}
    v_add3_u32 {vr(vOA)}, {vr(vT0)}, {vr(vT2)}, {vr(vT3)}
    s_lshl_b32 s{sT0}, s{sCB}, 1
    s_add_u32 s{sT0}, s{sT0}, 16
    s_mul_i32 s{sT0}, s{sT0}, {SLOT}
    s_add_u32 s{sT0}, s{sT0}, {OFF_O}
    s_mov_b32 s{sT1}, {f2u(SCALE_LOG2E)}
    """)
    for hh in range(2):
        for rt in range(2):
            T = 1 + rt
            a(f"ds_read_b128 {vr(vQ,4)}, {vr(vQA)} offset:{(0+hh)*SL + T*1024}")
            a(f"ds_read_b128 {vr(vKa,4)}, {vr(vQA)} offset:{(2+hh)*SL + (T-1)*1024}")
            a(f"ds_read_b128 {vr(vKb,4)}, {vr(vQA)} offset:{(2+hh)*SL + T*1024}")
            for dt, (va, vv) in enumerate(((vVA0, vV0), (vVA1, vV1))):
                a(f"ds_read_b64_tr_b16 {vr(vv,2)}, {vr(va)} offset:{(4+hh)*SL + (T-1)*1024}")
                a(f"ds_read_b64_tr_b16 {vr(vv+2,2)}, {vr(va)} offset:{(4+hh)*SL + T*1024}")
            a("s_waitcnt lgkmcnt(4)")
            ma = vMa0 if rt == 0 else vMa
            a(f"v_mfma_f32_16x16x32_bf16 {vr(vSa,4)}, {vr(vKa,4)}, {vr(vQ,4)}, {vr(ma,4)}")
            a(f"v_mfma_f32_16x16x32_bf16 {vr(vSb,4)}, {vr(vKb,4)}, {vr(vQ,4)}, {vr(vMb,4)}")
            a("s_nop 7")
            a(f"""
            v_max3_f32 {vr(vM)}, {vr(vSa)}, {vr(vSa+1)}, {vr(vSa+2)}
            v_max3_f32 {vr(vM)}, {vr(vM)}, {vr(vSa+3)}, {vr(vSb)}
            v_max3_f32 {vr(vM)}, {vr(vM)}, {vr(vSb+1)}, {vr(vSb+2)}
            v_max_f32 {vr(vM)}, {vr(vM)}, {vr(vSb+3)}
            v_mov_b32 {vr(vU0)}, {vr(vM)}
            s_nop 1
            v_permlane32_swap_b32 {vr(vM)}, {vr(vU0)}
            s_nop 0
            v_max_f32 {vr(vM)}, {vr(vM)}, {vr(vU0)}
            v_mov_b32 {vr(vU0)}, {vr(vM)}
            s_nop 1
            v_permlane16_swap_b32 {vr(vM)}, {vr(vU0)}
            s_nop 0
            v_max_f32 {vr(vM)}, {vr(vM)}, {vr(vU0)}
            v_mul_f32 {vr(vM)}, s{sT1}, {vr(vM)}
            """)
            for r in range(8): a(f"v_fma_f32 {vr(vSa+r)}, {vr(vSa+r)}, s{sT1}, -{vr(vM)}")
            for r in range(8): a(f"v_exp_f32 {vr(vSa+r)}, {vr(vSa+r)}")
            a("s_nop 0")
            for j in range(4): a(f"v_cvt_pk_bf16_f32 {vr(vSa+j)}, {vr(vSa+2*j)}, {vr(vSa+2*j+1)}")
            a("s_waitcnt lgkmcnt(0)\ns_nop 1")
            a(f"v_mfma_f32_16x16x32_bf16 {vr(vO0,4)}, {vr(vV0,4)}, {vr(vSa,4)}, 0")
            a(f"v_mfma_f32_16x16x32_bf16 {vr(vO1,4)}, {vr(vV1,4)}, {vr(vSa,4)}, 0")
            a("s_nop 7")
            a(f"""
            v_mov_b32 {vr(vU0)}, {vr(vO1)}
            v_mov_b32 {vr(vU1)}, {vr(vO1)}
            s_nop 1
            v_permlane32_swap_b32 {vr(vU0)}, {vr(vU1)}
            v_mov_b32 {vr(vU0)}, {vr(vU1)}
            s_nop 1
            v_permlane16_swap_b32 {vr(vU0)}, {vr(vU1)}
            s_nop 0
            v_rcp_f32 {vr(vRI)}, {vr(vU1)}
            v_cmp_gt_u32 vcc, 48, {vr(vLANE)}
            s_nop 1
            v_cndmask_b32 {vr(vU0)}, 0, {vr(vRI)}, vcc
            """)
            for r in range(4):
                a(f"v_mul_f32 {vr(vO0+r)}, {vr(vO0+r)}, {vr(vRI)}")
                a(f"v_mul_f32 {vr(vO1+r)}, {vr(vO1+r)}, {vr(vU0)}")
            a(f"""
            v_cvt_pk_bf16_f32 {vr(vO0)}, {vr(vO0)}, {vr(vO0+1)}
            v_cvt_pk_bf16_f32 {vr(vO0+1)}, {vr(vO0+2)}, {vr(vO0+3)}
            v_cvt_pk_bf16_f32 {vr(vO0+2)}, {vr(vO1)}, {vr(vO1+1)}
            v_cvt_pk_bf16_f32 {vr(vO0+3)}, {vr(vO1+2)}, {vr(vO1+3)}
            s_nop 1
            v_permlane16_swap_b32 {vr(vO0)}, {vr(vO0+2)}
            v_permlane16_swap_b32 {vr(vO0+1)}, {vr(vO0+3)}
            s_add_u32 s{sT2}, s{sT0}, {hh*SLOT + rt*1024}
            s_nop 0
            buffer_store_dwordx4 {vr(vO0,4)}, {vr(vOA)}, s[{sWS}:{sWS+3}], s{sT2} offen sc1
            s_nop 1
            """)
    a(f"s_lshl_b32 s{sT0}, s{sRB}, 7\ns_lshl_b32 s{sT1}, s{sCB}, 2\ns_add_u32 s{sT0}, s{sT0}, s{sT1}\ns_add_u32 s{sT0}, s{sT0}, {F2B}")
    publish_flag(a, sT0, vT0, vT1)
    stamp(a, "pub1")
    a(f"s_mov_b32 s59, 1")
    a.label(LP2)

def gen_p2(a):
    sQ, sK, sV, sO = 4, 8, 12, 16
    sHD, sI, sT0, sT1, sT2, sC = 21, 22, 23, 24, 25, 26
    vT0, vT1, vT2, vT3 = 2, 3, 4, 5
    vKA0, vKA1, vVA0, vVA1, vDM, vOA = 6, 7, 8, 9, 10, 11
    vQ = 12
    vKF = 20
    vVF = 36
    vO = 52
    vM, vU0, vU1, vMC = 68, 69, 70, 72
    vS = 76
    a(f"""
    s_lshr_b32 s{sHD}, s{sIDX}, 4
    s_lshl_b32 s{sT0}, s{sXCD}, 1
    s_add_u32 s{sHD}, s{sHD}, s{sT0}
    s_and_b32 s{sI}, s{sIDX}, 15
    s_mul_i32 s{sT0}, s{sHD}, {SLOT}
    """)
    for srd, part in ((sQ, 0), (sK, 1), (sV, 2)):
        a(f"s_add_u32 s{sT1}, s{sT0}, {OFF_QKV + part*16*SLOT}")
        a(f"s_add_u32 s{srd}, s{pWS}, s{sT1}\ns_addc_u32 s{srd+1}, s{pWS+1}, 0\ns_mov_b32 s{srd+2}, {SLOT}\ns_mov_b32 s{srd+3}, 0x20000")
    a(f"s_add_u32 s{sT1}, s{sT0}, {OFF_O}")
    a(f"s_add_u32 s{sO}, s{pWS}, s{sT1}\ns_addc_u32 s{sO+1}, s{pWS+1}, 0\ns_mov_b32 s{sO+2}, {SLOT}\ns_mov_b32 s{sO+3}, 0x20000")
    a(f"""
    s_lshl_b32 s{sT0}, s{sI}, 13
    s_sub_u32 s{sT0}, s{sT0}, 16384
    s_lshl_b32 s{sT1}, s{sWAVE}, 10
    s_add_u32 s{sT0}, s{sT0}, s{sT1}
    v_lshlrev_b32 {vr(vDM)}, 4, {vr(vLANE)}
    v_add_u32 {vr(vDM)}, s{sT0}, {vr(vDM)}
    v_and_b32 {vr(vT0)}, 31, {vr(vLANE)}
    v_bfe_u32 {vr(vT1)}, {vr(vLANE)}, 2, 2
    """)
    sigma_code(a, vT2, vT1, vT3)
    a(f"""
    v_lshrrev_b32 {vr(vT1)}, 5, {vr(vLANE)}
    v_xor_b32 {vr(vT2)}, {vr(vT2)}, {vr(vT1)}
    v_lshlrev_b32 {vr(vT2)}, 4, {vr(vT2)}
    s_lshl_b32 s{sT0}, s{sWAVE}, 5
    v_add_u32 {vr(vT3)}, s{sT0}, {vr(vT0)}
    v_lshlrev_b32 {vr(vT3)}, 6, {vr(vT3)}
    v_add_u32 {vr(vKA0)}, {vr(vT2)}, {vr(vT3)}
    v_xor_b32 {vr(vKA1)}, 32, {vr(vKA0)}
    """)
    for idx, (va, radd) in enumerate(((vVA0, 0), (vVA1, 2))):
        a(f"""
        v_lshrrev_b32 {vr(vT0)}, 5, {vr(vLANE)}
        v_add_u32 {vr(vT1)}, {radd}, {vr(vT0)}
        """)
        sigma_code(a, vT2, vT1, vT3)
        a(f"""
        v_bfe_u32 {vr(vT3)}, {vr(vLANE)}, 4, 1
        v_lshlrev_b32 {vr(vT3)}, 1, {vr(vT3)}
        v_xor_b32 {vr(vT2)}, {vr(vT2)}, {vr(vT3)}
        v_bfe_u32 {vr(vT3)}, {vr(vLANE)}, 1, 1
        v_xor_b32 {vr(vT2)}, {vr(vT2)}, {vr(vT3)}
        v_lshlrev_b32 {vr(vT2)}, 4, {vr(vT2)}
        v_and_b32 {vr(vT3)}, 1, {vr(vLANE)}
        v_lshlrev_b32 {vr(vT3)}, 3, {vr(vT3)}
        v_add_u32 {vr(vT2)}, {vr(vT2)}, {vr(vT3)}
        v_lshlrev_b32 {vr(vT1)}, 2, {vr(vT1)}
        v_bfe_u32 {vr(vT3)}, {vr(vLANE)}, 2, 2
        v_add_u32 {vr(vT1)}, {vr(vT1)}, {vr(vT3)}
        s_lshl_b32 s{sT0}, s{sWAVE}, 5
        v_add_u32 {vr(vT1)}, s{sT0}, {vr(vT1)}
        v_lshlrev_b32 {vr(vT1)}, 6, {vr(vT1)}
        v_add_u32 {vr(va)}, {vr(vT2)}, {vr(vT1)}
        v_add_u32 {vr(va)}, {VB}, {vr(va)}
        """)
    a(f"""
    v_and_b32 {vr(vT0)}, 31, {vr(vLANE)}
    v_lshrrev_b32 {vr(vT1)}, 5, {vr(vLANE)}
    v_lshlrev_b32 {vr(vT1)}, 2, {vr(vT1)}
    v_sub_u32 {vr(vT0)}, {vr(vT0)}, {vr(vT1)}
    v_mov_b32 {vr(vT3)}, {NEG_INF}
    """)
    for r in range(16):
        kr = 8 * (r >> 2) + (r & 3)
        a(f"""
        v_cmp_gt_i32 vcc, {kr}, {vr(vT0)}
        s_nop 1
        v_cndmask_b32 {vr(vS+r)}, {vr(vT3)}, 0, vcc
        v_cndmask_b32 {vr(vS+128+r)}, 0, {vr(vT3)}, vcc
        """)
    a(f"s_mov_b32 s{sC}, {f2u(SCALE_LOG2E)}\ns_mov_b32 s{sC+1}, {f2u(SCALE_LOG2E)}")
    a(f"""
    v_lshrrev_b32 {vr(vT0)}, 3, {vr(vLANE)}
    v_add_u32 {vr(vT0)}, s{sI}, {vr(vT0)}
    v_subrev_u32 {vr(vT0)}, 2, {vr(vT0)}
    v_max_i32 {vr(vT0)}, 0, {vr(vT0)}
    v_lshlrev_b32 {vr(vT0)}, 7, {vr(vT0)}
    v_and_b32 {vr(vT1)}, 7, {vr(vLANE)}
    v_lshlrev_b32 {vr(vT1)}, 2, {vr(vT1)}
    v_add3_u32 {vr(vT0)}, {vr(vT0)}, {vr(vT1)}, {F1}
    """)
    poll_flags(a, vT0, 24, vT1)
    stamp(a, "flag1")
    a(f"s_lshl_b32 s{sT1}, s{sWAVE}, 10")
    for j in range(6):
        a(f"s_add_u32 s{sT2}, s{sT1}, {KB + j*4096}\ns_mov_b32 m0, s{sT2}\ns_nop 0")
        a(f"buffer_load_dwordx4 {vr(vDM)}, s[{sK}:{sK+3}], 0 offen sc1 lds")
        a(f"s_add_u32 s{sT2}, s{sT1}, {VB + j*4096}\ns_mov_b32 m0, s{sT2}\ns_nop 0")
        a(f"buffer_load_dwordx4 {vr(vDM)}, s[{sV}:{sV+3}], 0 offen sc1 lds")
        if j < 5: a(f"v_add_u32 {vr(vDM)}, 4096, {vr(vDM)}")
    a(f"""
    s_lshl_b32 s{sT0}, s{sI}, 13
    v_add_u32 {vr(vT0)}, s{sT0}, {vr(vKA0)}
    v_add_u32 {vr(vT1)}, s{sT0}, {vr(vKA1)}
    buffer_load_dwordx4 {vr(vQ,4)}, {vr(vT0)}, s[{sQ}:{sQ+3}], 0 offen sc1
    buffer_load_dwordx4 {vr(vQ+4,4)}, {vr(vT1)}, s[{sQ}:{sQ+3}], 0 offen sc1
    """)
    L1 = a.newlabel("P2_wo"); L2 = L1 + "_j"
    a(f"s_cmp_eq_u32 s59, 0\ns_cbranch_scc1 {L1}")
    wo_dma(a, vT3, vT0, vT1, vT2, None, sT0, sT1, sT2, 40, 44)
    a(f"s_waitcnt vmcnt(32)\ns_branch {L2}")
    a.label(L1)
    a("s_waitcnt vmcnt(0)")
    a.label(L2)
    lab = a.newlabel("P2_nopatch")
    a(f"s_cmp_ge_u32 s{sI}, 2\ns_cbranch_scc1 {lab}")
    a(f"v_lshrrev_b32 {vr(vT0)}, 4, {vr(vLANE)}")
    sigma_code(a, vT1, vT0, vT2)
    a(f"""
    v_xor_b32 {vr(vT1)}, 3, {vr(vT1)}
    v_and_b32 {vr(vT2)}, 3, {vr(vLANE)}
    v_cmp_eq_u32 vcc, {vr(vT1)}, {vr(vT2)}
    v_lshlrev_b32 {vr(vT0)}, 4, {vr(vLANE)}
    s_lshl_b32 s{sT1}, s{sWAVE}, 10
    v_add_u32 {vr(vT0)}, s{sT1}, {vr(vT0)}
    v_mov_b32 {vr(vT2)}, 0xf14a
    s_and_saveexec_b64 s[28:29], vcc
    """)
    for j in range(4):
        if j == 2: a(f"s_cmp_eq_u32 s{sI}, 1\ns_cbranch_scc1 {lab}_r")
        a(f"ds_write_b32 {vr(vT0)}, {vr(vT2)} offset:{KB + j*4096 + 8}")
    a.label(lab + "_r")
    a("s_mov_b64 exec, s[28:29]\ns_waitcnt lgkmcnt(0)")
    a.label(lab)
    a("s_barrier")
    stamp(a, "kv")
    steps = [(kt, ks) for kt in range(9) for ks in range(2)]
    def kread(i):
        kt, ks = steps[i]
        a(f"ds_read_b128 {vr(vKF + (i%4)*4,4)}, {vr(vKA0 if ks == 0 else vKA1)} offset:{KB + kt*2048}")
    for i in range(3): kread(i)
    for i, (kt, ks) in enumerate(steps):
        if i + 3 < len(steps): kread(i + 3)
        a(f"s_waitcnt lgkmcnt({min(3, len(steps)-1-i)})")
        sreg = vS + kt * 16
        c = (vr(sreg, 16) if kt in (0, 8) else "0") if ks == 0 else vr(sreg, 16)
        a(f"v_mfma_f32_32x32x16_bf16 {vr(sreg,16)}, {vr(vKF+(i%4)*4,4)}, {vr(vQ+4*ks,4)}, {c}")
    a("s_nop 15")
    stamp(a, "qk")
    a(f"v_max3_f32 {vr(vM)}, {vr(vS)}, {vr(vS+1)}, {vr(vS+2)}")
    r = 3
    while r + 1 < 144:
        a(f"v_max3_f32 {vr(vM)}, {vr(vM)}, {vr(vS+r)}, {vr(vS+r+1)}")
        r += 2
    a(f"v_max_f32 {vr(vM)}, {vr(vM)}, {vr(vS+143)}")
    a(f"""
    v_mov_b32 {vr(vU0)}, {vr(vM)}
    s_nop 1
    v_permlane32_swap_b32 {vr(vM)}, {vr(vU0)}
    s_nop 0
    v_max_f32 {vr(vM)}, {vr(vM)}, {vr(vU0)}
    v_mul_f32 {vr(vMC)}, s{sC}, {vr(vM)}
    """)
    vsteps = [(kt, u) for kt in range(9) for u in range(2)]
    def vread(i):
        kt, u = vsteps[i]
        w = vVF + (i % 4) * 4
        a(f"ds_read_b64_tr_b16 {vr(w,2)}, {vr(vVA0)} offset:{kt*2048 + u*1024}")
        a(f"ds_read_b64_tr_b16 {vr(w+2,2)}, {vr(vVA1)} offset:{kt*2048 + u*1024}")
    for i in range(3): vread(i)
    for kt in range(9):
        sreg = vS + kt * 16
        for j in range(8):
            a(f"v_pk_fma_f32 {vr(sreg+2*j,2)}, {vr(sreg+2*j,2)}, s[{sC}:{sC+1}], {vr(vMC,2)} op_sel_hi:[1,0,0] neg_lo:[0,0,1] neg_hi:[0,0,1]")
        for r in range(16): a(f"v_exp_f32 {vr(sreg+r)}, {vr(sreg+r)}")
        a("s_nop 0")
        for j in range(8): a(f"v_cvt_pk_bf16_f32 {vr(sreg+j)}, {vr(sreg+2*j)}, {vr(sreg+2*j+1)}")
        for u in range(2):
            i = kt * 2 + u
            if i + 3 < len(vsteps): vread(i + 3)
            a(f"s_waitcnt lgkmcnt({2*min(3, len(vsteps)-1-i)})")
            c = "0" if i == 0 else vr(vO, 16)
            a(f"v_mfma_f32_32x32x16_bf16 {vr(vO,16)}, {vr(vVF+(i%4)*4,4)}, {vr(sreg+4*u,4)}, {c}")
    a("s_nop 15")
    a(f"""
    v_mov_b32 {vr(vU0)}, {vr(vO+12)}
    v_mov_b32 {vr(vU1)}, {vr(vO+12)}
    s_nop 1
    v_permlane32_swap_b32 {vr(vU0)}, {vr(vU1)}
    s_nop 0
    v_rcp_f32 {vr(vU1)}, {vr(vU1)}
    v_cmp_gt_u32 vcc, 32, {vr(vLANE)}
    s_nop 1
    v_cndmask_b32 {vr(vU0)}, 0, {vr(vU1)}, vcc
    """)
    for r in range(16): a(f"v_mul_f32 {vr(vO+r)}, {vr(vO+r)}, {vr(vU1 if r < 12 else vU0)}")
    for j in range(8): a(f"v_cvt_pk_bf16_f32 {vr(vO+j)}, {vr(vO+2*j)}, {vr(vO+2*j+1)}")
    a(f"""
    s_nop 1
    v_permlane32_swap_b32 {vr(vO)}, {vr(vO+2)}
    v_permlane32_swap_b32 {vr(vO+1)}, {vr(vO+3)}
    v_permlane32_swap_b32 {vr(vO+4)}, {vr(vO+6)}
    v_permlane32_swap_b32 {vr(vO+5)}, {vr(vO+7)}
    s_nop 1
    v_permlane16_swap_b32 {vr(vO)}, {vr(vO+4)}
    v_permlane16_swap_b32 {vr(vO+1)}, {vr(vO+5)}
    v_permlane16_swap_b32 {vr(vO+2)}, {vr(vO+6)}
    v_permlane16_swap_b32 {vr(vO+3)}, {vr(vO+7)}
    v_and_b32 {vr(vT0)}, 15, {vr(vLANE)}
    s_lshl_b32 s{sT0}, s{sI}, 7
    s_lshl_b32 s{sT1}, s{sWAVE}, 5
    s_add_u32 s{sT0}, s{sT0}, s{sT1}
    v_add_u32 {vr(vT0)}, s{sT0}, {vr(vT0)}
    v_lshlrev_b32 {vr(vT0)}, 6, {vr(vT0)}
    v_bfe_u32 {vr(vT1)}, {vr(vLANE)}, 4, 1
    v_lshlrev_b32 {vr(vT1)}, 5, {vr(vT1)}
    v_bfe_u32 {vr(vT2)}, {vr(vLANE)}, 5, 1
    v_lshlrev_b32 {vr(vT2)}, 4, {vr(vT2)}
    v_add3_u32 {vr(vOA)}, {vr(vT0)}, {vr(vT1)}, {vr(vT2)}
    buffer_store_dwordx4 {vr(vO,4)}, {vr(vOA)}, s[{sO}:{sO+3}], 0 offen sc1
    buffer_store_dwordx4 {vr(vO+4,4)}, {vr(vOA)}, s[{sO}:{sO+3}], 0 offen offset:1024 sc1
    """)
    stamp(a, "att")
    a(f"s_lshl_b32 s{sT0}, s{sI}, 7\ns_lshl_b32 s{sT1}, s{sHD}, 2\ns_add_u32 s{sT0}, s{sT0}, s{sT1}\ns_add_u32 s{sT0}, s{sT0}, {F2A}")
    publish_flag(a, sT0, vT0, vT1)
    stamp(a, "pub2")

def gen_p3(a):
    sX, sO, sOUT, sG = 4, 16, 20, 24
    sRB, sCB, sT0, sT1, sT2 = 29, 30, 31, 32, 33
    vT0, vT1, vT2, vT3 = 2, 3, 4, 5
    vTRA, vTRB, vOL, vXL, vGL, vOUT = 7, 8, 9, 10, 11, 12
    vWF = 16
    NRING = 6
    vAA, vAB = 40, 56
    vG = 72
    vGW = 76
    aO = 0
    aX = 128
    a(f"""
    s_lshl_b32 s{sRB}, s{sXCD}, 2
    s_lshr_b32 s{sT2}, s{sIDX}, 3
    s_add_u32 s{sRB}, s{sRB}, s{sT2}
    s_and_b32 s{sCB}, s{sIDX}, 7
    """)
    make_srd(a, sX, pX, S * XROW)
    make_srd(a, sG, pGW, 896)
    make_srd(a, sOUT, pOUT, S * 896)
    make_srd(a, sO, pWS, 32 * SLOT, OFF_O)
    a(f"""
    v_and_b32 {vr(vT0)}, 15, {vr(vLANE)}
    s_lshl_b32 s{sT0}, s{sRB}, 6
    s_lshl_b32 s{sT1}, s{sWAVE}, 4
    s_add_u32 s{sT0}, s{sT0}, s{sT1}
    v_add_u32 {vr(vT0)}, s{sT0}, {vr(vT0)}
    v_lshrrev_b32 {vr(vT1)}, 4, {vr(vLANE)}
    v_lshlrev_b32 {vr(vGL)}, 4, {vr(vT1)}
    v_lshlrev_b32 {vr(vT2)}, 6, {vr(vT0)}
    v_add_u32 {vr(vOL)}, {vr(vT2)}, {vr(vGL)}
    v_mul_u32_u24 {vr(vT2)}, 896, {vr(vT0)}
    v_add_u32 {vr(vXL)}, {vr(vT2)}, {vr(vGL)}
    v_and_b32 {vr(vT3)}, 1, {vr(vT1)}
    v_lshlrev_b32 {vr(vT3)}, 5, {vr(vT3)}
    v_lshrrev_b32 {vr(vT1)}, 1, {vr(vT1)}
    v_lshlrev_b32 {vr(vT1)}, 4, {vr(vT1)}
    v_add3_u32 {vr(vOUT)}, {vr(vT2)}, {vr(vT3)}, {vr(vT1)}
    s_mul_i32 s{sT1}, s{sCB}, 112
    v_add_u32 {vr(vOUT)}, s{sT1}, {vr(vOUT)}
    """)
    for ks in range(14):
        a(f"buffer_load_dwordx4 {ar(aX+ks*4,4)}, {vr(vXL)}, s[{sX}:{sX+3}], 0 offen offset:{64*ks}")
        a(f"buffer_load_dwordx4 {vr(vGW+ks*4,4)}, {vr(vGL)}, s[{sG}:{sG+3}], 0 offen offset:{64*ks}")
    a(f"""
    v_lshrrev_b32 {vr(vT0)}, 4, {vr(vLANE)}
    v_and_b32 {vr(vT1)}, 1, {vr(vT0)}
    v_lshlrev_b32 {vr(vT1)}, 3, {vr(vT1)}
    v_lshrrev_b32 {vr(vT2)}, 1, {vr(vT0)}
    v_add_u32 {vr(vT1)}, {vr(vT1)}, {vr(vT2)}
    v_bfe_u32 {vr(vT2)}, {vr(vLANE)}, 2, 2
    v_lshlrev_b32 {vr(vT2)}, 1, {vr(vT2)}
    v_add_u32 {vr(vT1)}, {vr(vT1)}, {vr(vT2)}
    v_mul_u32_u24 {vr(vT1)}, 112, {vr(vT1)}
    v_and_b32 {vr(vT2)}, 3, {vr(vLANE)}
    v_lshlrev_b32 {vr(vT3)}, 3, {vr(vT2)}
    v_add_u32 {vr(vTRA)}, {vr(vT1)}, {vr(vT3)}
    v_add_u32 {vr(vTRA)}, {WOB}, {vr(vTRA)}
    v_add_u32 {vr(vTRB)}, {16*3584}, {vr(vTRA)}
    """)
    a(f"""
    s_lshr_b32 s{sT0}, s{sRB}, 1
    s_lshl_b32 s{sT0}, s{sT0}, 7
    s_add_u32 s{sT1}, s{sT0}, {F2B}
    v_lshlrev_b32 {vr(vT0)}, 2, {vr(vLANE)}
    v_add_u32 {vr(vT0)}, s{sT1}, {vr(vT0)}
    """)
    poll_flags(a, vT0, 8, vT1)
    stamp(a, "flagB")
    order = [(1, h) for h in range(16)] + [(0, h) for h in range(16)]
    def oload(i):
        br, h = order[i]
        a(f"s_mov_b32 s{sT2}, {(br*16+h)*SLOT}")
        a(f"buffer_load_dwordx4 {ar(aO+i*4,4)}, {vr(vOL)}, s[{sO}:{sO+3}], s{sT2} offen sc1")
    for i in range(16): oload(i)
    a("s_waitcnt vmcnt(16)")
    a("s_barrier")
    stamp(a, "gateld")
    for ks in range(14):
        c = "0" if ks == 0 else vr(vG, 4)
        a(f"v_mfma_f32_16x16x32_bf16 {vr(vG,4)}, {vr(vGW+ks*4,4)}, {ar(aX+ks*4,4)}, {c}")
    PF = NRING - 1
    def half(i0):
        steps = [(i, t) for i in range(i0, i0 + 16) for t in range(4)]
        def rd(n):
            i, t = steps[n]
            br, h = order[i]
            va = vTRB if br == 1 else vTRA
            w = vWF + (n % NRING) * 4
            a(f"ds_read_b64_tr_b16 {vr(w,2)}, {vr(va)} offset:{h*3584 + 32*t}")
            a(f"ds_read_b64_tr_b16 {vr(w+2,2)}, {vr(va)} offset:{h*3584 + 32*t + 1792}")
        for n in range(PF): rd(n)
        for n, (i, t) in enumerate(steps):
            if n + PF < len(steps): rd(n + PF)
            if t == 0: a(f"s_waitcnt vmcnt({i0+15-i})")
            a(f"s_waitcnt lgkmcnt({2*min(PF, len(steps)-1-n)})")
            br, h = order[i]
            acc = (vAB if br == 1 else vAA) + t * 4
            c = "0" if h == 0 else vr(acc, 4)
            a(f"v_mfma_f32_16x16x32_bf16 {vr(acc,4)}, {vr(vWF+(n%NRING)*4,4)}, {ar(aO+i*4,4)}, {c}")
    half(0)
    a(f"""
    v_mul_f32 {vr(vG)}, {f2u(-1.4426950408889634)}, {vr(vG)}
    v_exp_f32 {vr(vG)}, {vr(vG)}
    s_nop 0
    v_add_f32 {vr(vG)}, 1.0, {vr(vG)}
    v_rcp_f32 {vr(vG)}, {vr(vG)}
    """)
    stamp(a, "p3B")
    a(f"""
    s_lshr_b32 s{sT0}, s{sRB}, 1
    s_lshl_b32 s{sT0}, s{sT0}, 7
    s_add_u32 s{sT1}, s{sT0}, {F2A}
    v_lshlrev_b32 {vr(vT0)}, 2, {vr(vLANE)}
    v_add_u32 {vr(vT0)}, s{sT1}, {vr(vT0)}
    """)
    poll_flags(a, vT0, 16, vT1)
    stamp(a, "flag2")
    for i in range(16, 32): oload(i)
    steps = [(i, t) for i in range(16, 32) for t in range(4)]
    def rd(n):
        i, t = steps[n]
        br, h = order[i]
        w = vWF + (n % NRING) * 4
        a(f"ds_read_b64_tr_b16 {vr(w,2)}, {vr(vTRA)} offset:{h*3584 + 32*t}")
        a(f"ds_read_b64_tr_b16 {vr(w+2,2)}, {vr(vTRA)} offset:{h*3584 + 32*t + 1792}")
    for n in range(PF): rd(n)
    for n, (i, t) in enumerate(steps):
        if n + PF < len(steps): rd(n + PF)
        if t == 0: a(f"s_waitcnt vmcnt({31-i})")
        a(f"s_waitcnt lgkmcnt({2*min(PF, len(steps)-1-n)})")
        br, h = order[i]
        acc = vAA + t * 4
        c = "0" if h == 0 else vr(acc, 4)
        a(f"v_mfma_f32_16x16x32_bf16 {vr(acc,4)}, {vr(vWF+(n%NRING)*4,4)}, {ar(aO+i*4,4)}, {c}")
    a("s_nop 7")
    for t in range(4):
        for r in range(4):
            x, y = vAA + t * 4 + r, vAB + t * 4 + r
            a(f"v_sub_f32 {vr(x)}, {vr(x)}, {vr(y)}")
            a(f"v_fma_f32 {vr(x)}, {vr(x)}, {vr(vG)}, {vr(y)}")
    for p in range(2):
        x, y = vAA + (2 * p) * 4, vAA + (2 * p + 1) * 4
        d = vAB + p * 4
        a(f"""
        v_cvt_pk_bf16_f32 {vr(d)}, {vr(x)}, {vr(x+1)}
        v_cvt_pk_bf16_f32 {vr(d+1)}, {vr(x+2)}, {vr(x+3)}
        v_cvt_pk_bf16_f32 {vr(d+2)}, {vr(y)}, {vr(y+1)}
        v_cvt_pk_bf16_f32 {vr(d+3)}, {vr(y+2)}, {vr(y+3)}
        s_nop 1
        v_permlane16_swap_b32 {vr(d)}, {vr(d+2)}
        v_permlane16_swap_b32 {vr(d+1)}, {vr(d+3)}
        """)
    a(f"""
    s_nop 0
    buffer_store_dwordx4 {vr(vAB,4)}, {vr(vOUT)}, s[{sOUT}:{sOUT+3}], 0 offen
    s_mov_b32 exec_hi, 0x0000ffff
    buffer_store_dwordx4 {vr(vAB+4,4)}, {vr(vOUT)}, s[{sOUT}:{sOUT+3}], 0 offen offset:64
    s_mov_b32 exec_hi, -1
    """)

def gen_kernel(a):
    a("s_cmp_ge_u32 s2, 256\ns_cbranch_scc1 K_END")
    a(f"s_load_dwordx16 s[64:79], s[0:1], 0\ns_load_dwordx4 s[80:83], s[0:1], 64")
    if G.stamps:
        a("s_memrealtime s[50:51]\ns_memtime s[48:49]\ns_waitcnt lgkmcnt(0)\nv_writelane_b32 v254, s50, 0\nv_writelane_b32 v254, s48, 1")
    a(f"""
    v_and_b32 {vr(vLANE)}, 63, v0
    v_lshrrev_b32 v2, 6, v0
    s_and_b32 s{sXCD}, s2, 7
    v_readfirstlane_b32 s{sWAVE}, v2
    s_lshr_b32 s{sIDX}, s2, 3
    """)
    if G.prefetch:
        a("s_getpc_b64 s[60:61]")
        a.label("PF_BASE")
        a("v_lshlrev_b32 v3, 6, v0")
        for j in range(3):
            a(f"""
            v_cmp_gt_u32 vcc, K_CODE_END-PF_BASE, v3
            s_and_saveexec_b64 s[62:63], vcc
            s_cbranch_execz PF_skip{j}
            global_load_dword v255, v3, s[60:61]
            """)
            a.label(f"PF_skip{j}")
            a("s_mov_b64 exec, s[62:63]")
            if j < 2: a("v_add_u32 v3, 16384, v3")
    L = "NONCE_skip"
    a(f"""
    s_or_b32 s60, s2, s{sWAVE}
    s_cmp_lg_u32 s60, 0
    s_cbranch_scc1 {L}
    s_memrealtime s[60:61]
    s_waitcnt lgkmcnt(0)
    s_or_b32 s60, s60, 1
    v_mov_b32 v2, 0
    v_mov_b32 v3, s60
    s_mov_b64 exec, 1
    global_store_dword v2, v3, s[{pDBG}:{pDBG+1}] sc1
    s_mov_b64 exec, -1
    """)
    a.label(L)
    gen_p1(a)
    gen_p2(a)
    gen_p3(a)
    if G.stamps:
        a("s_waitcnt vmcnt(0)")
        stamp(a, "end")
        a(f"s_cmp_lg_u32 s{sWAVE}, 0\ns_cbranch_scc1 K_END")
        a(f"s_lshl_b32 s62, s2, 8\ns_add_u32 s62, s62, {OFF_ST}")
        a(f"s_add_u32 s4, s{pWS}, s62\ns_addc_u32 s5, s{pWS+1}, 0")
        a("v_lshlrev_b32 v2, 2, v1\nglobal_store_dword v2, v254, s[4:5]")
    a.label("K_END")
    a("s_endpgm")
    a.label("K_CODE_END")

def build(path):
    hdr = open("cdna_kernels/" + NAME + ".s.ref").read().split("\n")
    comments = [l for l in hdr if l.startswith(";") and "@launch" not in l and "Override launch" not in l and "grid=ceil" not in l]
    out = "\n".join(comments) + "\n"
    out += "; @launch grid=(256,1,1) block=(256,1,1) lds=163840\n"
    out += '.amdgcn_target "amdgcn-amd-amdhsa--gfx950"\n.text\n'
    a = Asm(); gen_kernel(a)
    out += kernel_header(KNAME) + a.text()
    out += '.section .rodata,"a"\n' + kernel_desc(KNAME, 512, 102, 256)
    open(path, "w").write(out)

if __name__ == "__main__":
    G.stamps = "--stamps" in sys.argv
    G.prefetch = "--nopf" not in sys.argv
    build(sys.argv[1])
    if G.stamps: open(sys.argv[1] + ".names", "w").write("\n".join(STAMP_NAMES))
```

```python
from asmlib import *
import sys, struct

NAME = "gated_mix__sliding_block__sliding_local_dilated__prompt"
KNAME = NAME + "_kernel"
S, D, H, DH = 2048, 448, 16, 28
WROW, XROW = 2688, 896
SLOT = S * 64
OFF_QKV = 0
OFF_O = 48 * SLOT
OFF_F = OFF_O + 32 * SLOT
F1, F2A, F2B = 0, 2048, 4096
OFF_ST = OFF_F + 8192
WS_USED = OFF_ST + 256 * 256
PS = 7184
BS = 3 * PS
NEG_INF = 0xff800000
SCALE_LOG2E = (DH ** -0.5) * 1.4426950408889634
KB, VB, WOB = 0, 24576, 49152

def f2u(f): return struct.unpack("<I", struct.pack("<f", f))[0]

class G:
    stamps = False
    prefetch = True
    spin_max = 1 << 22
    dbgtime = False

sNONCE = 3
pX, pWA, pWOA, pWB, pWOB, pGW, pOUT, pDBG, pWS = 64, 66, 68, 72, 74, 76, 78, 80, 82
sWAVE, sXCD, sIDX = 56, 57, 58
sST = 84
vLANE = 1

def sigma_code(a, vdst, vR, vtmp):
    a(f"""
    v_and_b32 {vr(vdst)}, 1, {vr(vR)}
    v_lshlrev_b32 {vr(vdst)}, 1, {vr(vdst)}
    v_lshrrev_b32 {vr(vtmp)}, 1, {vr(vR)}
    v_mul_u32_u24 {vr(vtmp)}, 3, {vr(vtmp)}
    v_xor_b32 {vr(vdst)}, {vr(vdst)}, {vr(vtmp)}
    """)

def make_srd(a, s, base_pair, size, off=None):
    if off is None:
        a(f"s_mov_b32 s{s}, s{base_pair}\ns_mov_b32 s{s+1}, s{base_pair+1}")
    else:
        a(f"s_add_u32 s{s}, s{base_pair}, {off}\ns_addc_u32 s{s+1}, s{base_pair+1}, 0")
    a(f"s_mov_b32 s{s+2}, {size}\ns_mov_b32 s{s+3}, 0x20000")

STAMP_NAMES = []
def stamp(a, name):
    if G.stamps:
        if name not in STAMP_NAMES: STAMP_NAMES.append(name)
        k = STAMP_NAMES.index(name) + 2
        a(f"s_memtime s[48:49]\ns_waitcnt lgkmcnt(0)\nv_writelane_b32 v254, s48, {k}")

def get_nonce(a, vtmp, first_loaded):
    L = a.newlabel("nonce"); Ld = L + "_done"
    if first_loaded:
        a(f"v_readfirstlane_b32 s{sNONCE}, {vr(vtmp)}")
        a(f"s_cmp_lg_u32 s{sNONCE}, 0\ns_cbranch_scc1 {Ld}")
    a(f"s_mov_b32 s62, 0")
    a.label(L)
    a(f"""
    v_mov_b32 {vr(vtmp)}, 0
    global_load_dword {vr(vtmp)}, {vr(vtmp)}, s[{pDBG}:{pDBG+1}] sc1
    s_waitcnt vmcnt(0)
    v_readfirstlane_b32 s{sNONCE}, {vr(vtmp)}
    s_add_u32 s62, s62, 1
    s_cmp_gt_u32 s62, {G.spin_max}
    s_cbranch_scc1 {Ld}
    s_cmp_eq_u32 s{sNONCE}, 0
    s_cbranch_scc1 {L}
    """)
    a.label(Ld)

def publish_flag(a, sOff, vt0, vt1):
    L = a.newlabel("pub")
    a(f"""
    s_waitcnt vmcnt(0)
    s_barrier
    s_cmp_lg_u32 s{sWAVE}, 0
    s_cbranch_scc1 {L}
    s_add_u32 s60, s{pWS}, {OFF_F}
    s_addc_u32 s61, s{pWS+1}, 0
    v_mov_b32 {vr(vt0)}, s{sOff}
    v_mov_b32 {vr(vt1)}, s{sNONCE}
    s_mov_b64 exec, 1
    global_store_dword {vr(vt0)}, {vr(vt1)}, s[60:61] sc1
    s_mov_b64 exec, -1
    """)
    a.label(L)

def poll_flags(a, vOff, nlanes, vt):
    L = a.newlabel("poll"); Ld = L + "_done"; Ls = L + "_skip"
    hi = (1 << nlanes) - 1
    a(f"""
    s_cmp_lg_u32 s{sWAVE}, 0
    s_cbranch_scc1 {Ls}
    s_add_u32 s60, s{pWS}, {OFF_F}
    s_addc_u32 s61, s{pWS+1}, 0
    s_mov_b32 exec_lo, {hi & 0xffffffff:#x}
    s_mov_b32 exec_hi, {hi >> 32:#x}
    s_mov_b32 s62, 0
    """)
    a.label(L)
    a(f"""
    global_load_dword {vr(vt)}, {vr(vOff)}, s[60:61] sc1
    s_add_u32 s62, s62, 1
    s_waitcnt vmcnt(0)
    v_cmp_ne_u32 vcc, s{sNONCE}, {vr(vt)}
    s_cmp_gt_u32 s62, {G.spin_max}
    s_cbranch_scc1 {Ld}
    s_cbranch_vccnz {L}
    """)
    a.label(Ld)
    a("s_mov_b64 exec, -1")
    a.label(Ls)
    a("s_barrier")

def wo_dma(a, vW, vT0, vT1, vT2, sCB3, sT0, sT1, sM, sWOA, sWOB):
    a(f"""
    v_mul_u32_u24 {vr(vT0)}, 37, {vr(vLANE)}
    v_lshrrev_b32 {vr(vT0)}, 8, {vr(vT0)}
    v_mul_u32_u24 {vr(vT1)}, 7, {vr(vT0)}
    v_sub_u32 {vr(vT1)}, {vr(vLANE)}, {vr(vT1)}
    v_and_b32 {vr(vT2)}, 1, {vr(vT0)}
    v_lshlrev_b32 {vr(vT2)}, 4, {vr(vT2)}
    v_lshrrev_b32 {vr(vT0)}, 1, {vr(vT0)}
    v_add_u32 {vr(vT2)}, {vr(vT2)}, {vr(vT0)}
    v_mul_u32_u24 {vr(vT2)}, 896, {vr(vT2)}
    v_lshlrev_b32 {vr(vT1)}, 4, {vr(vT1)}
    v_add_u32 {vr(vW)}, {vr(vT2)}, {vr(vT1)}
    s_and_b32 s{sT0}, s{sWAVE}, 1
    s_lshl_b32 s{sT0}, s{sT0}, 3
    s_lshr_b32 s{sT1}, s{sWAVE}, 1
    s_lshl_b32 s{sT1}, s{sT1}, 2
    s_add_u32 s{sT0}, s{sT0}, s{sT1}
    s_mul_i32 s{sT0}, s{sT0}, 896
    s_and_b32 s{sT1}, s{sIDX}, 7
    s_mul_i32 s{sT1}, s{sT1}, 112
    s_add_u32 s{sT0}, s{sT0}, s{sT1}
    v_add_u32 {vr(vW)}, s{sT0}, {vr(vW)}
    s_mul_i32 s{sM}, s{sWAVE}, 896
    """)
    make_srd(a, sWOA, pWOA, D * 896)
    make_srd(a, sWOB, pWOB, D * 896)
    a("s_mov_b32 exec_hi, 0x00ffffff")
    for h in range(16):
        for br in (1, 0):
            srd = sWOB if br == 1 else sWOA
            a(f"s_add_u32 s{sT0}, s{sM}, {WOB + (br*16+h)*3584}\ns_mov_b32 m0, s{sT0}\ns_nop 0")
            a(f"buffer_load_dwordx4 {vr(vW)}, s[{srd}:{srd+3}], 0 offen lds")
        if h < 15: a(f"v_add_u32 {vr(vW)}, {28*896}, {vr(vW)}")
    a("s_mov_b32 exec_hi, -1")

def gen_p1(a):
    sX, sW, sWS = 4, 8, 12
    sRB, sCB, sBR = 17, 18, 19
    sBP, sWOFF, sPSTR, sT0, sT1, sT2, sXOFF, sM0 = 20, 21, 22, 23, 24, 25, 26, 27
    sLDSW = 28
    vWOFF, vX0, vX1, vXH = 2, 3, 4, 5
    vTR, vTR3 = 6, 7
    vT0, vT1, vT2, vT3 = 8, 9, 10, 11
    vEP = 12
    vPAD = 23
    vWF = 24
    NRING = 6
    vACC = 48
    vACCH = 136
    vMISC = 168
    vNON = 230
    aX = 0
    aXH = 112

    a(f"""
    s_lshr_b32 s{sBR}, s{sIDX}, 4
    s_lshr_b32 s{sRB}, s{sXCD}, 1
    s_lshl_b32 s{sRB}, s{sRB}, 2
    s_lshr_b32 s{sT2}, s{sIDX}, 2
    s_and_b32 s{sT2}, s{sT2}, 3
    s_add_u32 s{sRB}, s{sRB}, s{sT2}
    s_and_b32 s{sCB}, s{sXCD}, 1
    s_lshl_b32 s{sCB}, s{sCB}, 2
    s_and_b32 s{sT2}, s{sIDX}, 3
    s_add_u32 s{sCB}, s{sCB}, s{sT2}
    s_and_b32 s{sBP}, s{sIDX}, 15
    s_cmp_ge_u32 s{sBP}, 7
    s_cselect_b32 s{sT2}, 7, 0
    s_sub_u32 s{sBP}, s{sBP}, s{sT2}
    s_cmp_ge_u32 s{sBP}, 7
    s_cselect_b32 s{sT2}, 7, 0
    s_sub_u32 s{sBP}, s{sBP}, s{sT2}
    """)
    a(f"""
    v_mul_u32_u24 {vr(vT0)}, 37, {vr(vLANE)}
    v_lshrrev_b32 {vr(vT0)}, 8, {vr(vT0)}
    v_mul_u32_u24 {vr(vT1)}, 7, {vr(vT0)}
    v_sub_u32 {vr(vT1)}, {vr(vLANE)}, {vr(vT1)}
    v_and_b32 {vr(vT2)}, 1, {vr(vT0)}
    v_lshlrev_b32 {vr(vT2)}, 4, {vr(vT2)}
    v_lshrrev_b32 {vr(vT0)}, 1, {vr(vT0)}
    v_add_u32 {vr(vT2)}, {vr(vT2)}, {vr(vT0)}
    v_mul_u32_u24 {vr(vT2)}, {WROW}, {vr(vT2)}
    v_lshlrev_b32 {vr(vT1)}, 4, {vr(vT1)}
    v_add_u32 {vr(vWOFF)}, {vr(vT2)}, {vr(vT1)}
    """)
    a(f"""
    s_lshl_b32 s{sT0}, s{sRB}, 7
    s_lshl_b32 s{sT1}, s{sWAVE}, 5
    s_add_u32 s{sT0}, s{sT0}, s{sT1}
    v_and_b32 {vr(vT0)}, 15, {vr(vLANE)}
    v_lshrrev_b32 {vr(vT1)}, 4, {vr(vLANE)}
    v_lshlrev_b32 {vr(vT1)}, 4, {vr(vT1)}
    v_add_u32 {vr(vT2)}, s{sT0}, {vr(vT0)}
    v_mul_u32_u24 {vr(vT2)}, {XROW}, {vr(vT2)}
    v_add_u32 {vr(vX0)}, {vr(vT2)}, {vr(vT1)}
    v_add_u32 {vr(vX1)}, {16*XROW}, {vr(vX0)}
    s_lshl_b32 s{sT0}, s{sRB}, 7
    s_sub_u32 s{sT0}, s{sT0}, 16
    v_add_u32 {vr(vT2)}, s{sT0}, {vr(vT0)}
    v_mul_i32_i24 {vr(vT2)}, {XROW}, {vr(vT2)}
    v_add_u32 {vr(vXH)}, {vr(vT2)}, {vr(vT1)}
    """)
    a("s_waitcnt lgkmcnt(0)")
    stamp(a, "karg")
    make_srd(a, sX, pX, S * XROW)
    a(f"""
    s_cmp_eq_u32 s{sBR}, 0
    s_cselect_b32 s{sW}, s{pWA}, s{pWB}
    s_cselect_b32 s{sW+1}, s{pWA+1}, s{pWB+1}
    s_mov_b32 s{sW+2}, {D*WROW}
    s_mov_b32 s{sW+3}, 0x20000
    s_mov_b32 s{sT1}, 896
    s_cselect_b32 s{sPSTR}, 112, s{sT1}
    s_mov_b32 s{sT1}, 112
    s_cselect_b32 s{sT0}, 336, s{sT1}
    s_mul_i32 s{sWOFF}, s{sCB}, s{sT0}
    """)
    a(f"""
    s_lshr_b32 s{sT0}, s{sWAVE}, 1
    s_lshl_b32 s{sT0}, s{sT0}, 5
    s_and_b32 s{sT1}, s{sWAVE}, 1
    s_lshl_b32 s{sT1}, s{sT1}, 2
    s_add_u32 s{sT0}, s{sT0}, s{sT1}
    s_mul_i32 s{sT0}, s{sT0}, {WROW}
    s_add_u32 s{sWOFF}, s{sWOFF}, s{sT0}
    s_mul_i32 s{sLDSW}, s{sWAVE}, {2*896}
    """)

    def issue_block(b, halo):
        a(f"""
        s_mul_i32 s{sT0}, s{sBP}, {64*WROW}
        s_add_u32 s{sT0}, s{sT0}, s{sWOFF}
        s_lshl_b32 s{sXOFF}, s{sBP}, 7
        s_mov_b32 exec_hi, 0x00ffffff
        """)
        for p in range(3):
            for e in range(2):
                a(f"s_add_u32 s{sM0}, s{sLDSW}, {b*BS + p*PS + e*896}")
                a(f"s_mov_b32 m0, s{sM0}")
                if e == 0: a(f"s_mov_b32 s{sT1}, s{sT0}")
                else: a(f"s_add_u32 s{sT1}, s{sT0}, {8*WROW}")
                a(f"buffer_load_dwordx4 {vr(vWOFF)}, s[{sW}:{sW+3}], s{sT1} offen lds")
            if p < 2: a(f"s_add_u32 s{sT0}, s{sT0}, s{sPSTR}")
        a("s_mov_b32 exec_hi, -1")
        for ks in range(2):
            for rt in range(2):
                reg = aX + ((b * 2 + ks) * 2 + rt) * 4
                a(f"buffer_load_dwordx4 {ar(reg,4)}, {vr(vX0 if rt == 0 else vX1)}, s[{sX}:{sX+3}], s{sXOFF} offen offset:{64*ks}")
            if halo:
                reg = aXH + (b * 2 + ks) * 4
                a(f"buffer_load_dwordx4 {ar(reg,4)}, {vr(vXH)}, s[{sX}:{sX+3}], s{sXOFF} offen offset:{64*ks}")
        a(f"""
        s_add_u32 s{sBP}, s{sBP}, 1
        s_cmp_eq_u32 s{sBP}, 7
        s_cselect_b32 s{sBP}, 0, s{sBP}
        """)

    def setup_lane_consts(isB):
        a(f"""
        v_lshrrev_b32 {vr(vT0)}, 4, {vr(vLANE)}
        v_and_b32 {vr(vT1)}, 1, {vr(vT0)}
        v_lshlrev_b32 {vr(vT1)}, 3, {vr(vT1)}
        v_lshrrev_b32 {vr(vT2)}, 1, {vr(vT0)}
        v_add_u32 {vr(vT1)}, {vr(vT1)}, {vr(vT2)}
        v_bfe_u32 {vr(vT2)}, {vr(vLANE)}, 2, 2
        v_lshlrev_b32 {vr(vT2)}, 1, {vr(vT2)}
        v_add_u32 {vr(vT1)}, {vr(vT1)}, {vr(vT2)}
        v_mul_u32_u24 {vr(vT1)}, 112, {vr(vT1)}
        v_and_b32 {vr(vT2)}, 3, {vr(vLANE)}
        v_lshlrev_b32 {vr(vT3)}, 3, {vr(vT2)}
        v_add_u32 {vr(vTR)}, {vr(vT1)}, {vr(vT3)}
        v_add_u32 {vr(vTR3)}, {96}, {vr(vTR)}
        v_add_u32 {vr(vT3)}, {PS-16}, {vr(vTR)}
        v_cmp_lt_u32 vcc, 1, {vr(vT2)}
        s_nop 1
        v_cndmask_b32 {vr(vTR3)}, {vr(vTR3)}, {vr(vT3)}, vcc
        """)
        slotsz = (144 if isB else 128) * 64
        a(f"""
        v_and_b32 {vr(vT0)}, 15, {vr(vLANE)}
        s_lshl_b32 s{sT0}, s{sWAVE}, 5
        v_add_u32 {vr(vT1)}, s{sT0}, {vr(vT0)}
        v_lshlrev_b32 {vr(vPAD)}, 6, {vr(vT1)}
        v_lshrrev_b32 {vr(vT0)}, 2, {vr(vT0)}
        """)
        sigma_code(a, vT1, vT0, vT2)
        a(f"v_lshrrev_b32 {vr(vT0)}, 4, {vr(vLANE)}")
        for t in range(11):
            e = vEP + t
            a(f"""
            v_add_u32 {vr(vT2)}, {4*t}, {vr(vT0)}
            v_mul_u32_u24 {vr(vT3)}, 37, {vr(vT2)}
            v_lshrrev_b32 {vr(vT3)}, 8, {vr(vT3)}
            v_mul_u32_u24 {vr(e)}, 7, {vr(vT3)}
            v_sub_u32 {vr(vT2)}, {vr(vT2)}, {vr(e)}
            v_mul_u32_u24 {vr(vT3)}, {slotsz}, {vr(vT3)}
            v_add_u32 {vr(vT3)}, {vr(vT3)}, {vr(vPAD)}
            v_lshrrev_b32 {vr(e)}, 1, {vr(vT2)}
            v_xor_b32 {vr(e)}, {vr(e)}, {vr(vT1)}
            v_lshlrev_b32 {vr(e)}, 4, {vr(e)}
            v_add_u32 {vr(e)}, {vr(e)}, {vr(vT3)}
            v_and_b32 {vr(vT2)}, 1, {vr(vT2)}
            v_lshlrev_b32 {vr(vT2)}, 3, {vr(vT2)}
            v_add_u32 {vr(e)}, {vr(e)}, {vr(vT2)}
            """)

    def main_loop(halo):
        n = 12 if halo else 10
        waits = [4 * n, 4 * n, 4 * n + 1, 3 * n + 1, 2 * n + 1, n + 1, 0]
        steps = [(b, ks, t) for b in range(7) for ks in range(2) for t in range(11)]
        PF = NRING - 1
        def tileoff(t):
            if t == 3: return 0
            p = (4 * t) // 14
            return p * PS + (4 * t - 14 * p) * 8
        def emit_read(i):
            b, ks, t = steps[i]
            if ks == 0 and t == 0:
                a(f"s_waitcnt vmcnt({waits[b]})")
                a("s_barrier")
                stamp(a, f"blk{b}")
                if b == 0: issue_block(5, halo)
                if b == 1:
                    issue_block(6, halo)
                    a(f"v_mov_b32 {vr(vNON)}, 0")
                    a(f"global_load_dword {vr(vNON)}, {vr(vNON)}, s[{pDBG}:{pDBG+1}] sc1")
                if b > 0:
                    a(f"v_add_u32 {vr(vTR)}, {BS}, {vr(vTR)}")
                    a(f"v_add_u32 {vr(vTR3)}, {BS}, {vr(vTR3)}")
            va = vTR3 if t == 3 else vTR
            off = ks * 3584 + tileoff(t)
            w = vWF + (i % NRING) * 4
            a(f"ds_read_b64_tr_b16 {vr(w,2)}, {vr(va)} offset:{off}")
            a(f"ds_read_b64_tr_b16 {vr(w+2,2)}, {vr(va)} offset:{off+1792}")
        for i in range(min(PF, len(steps))): emit_read(i)
        for i, (b, ks, t) in enumerate(steps):
            if i + PF < len(steps):
                emit_read(i + PF); out = PF
            else:
                out = len(steps) - 1 - i
            a(f"s_waitcnt lgkmcnt({min(2*out,15)})")
            w = vWF + (i % NRING) * 4
            first = (b == 0 and ks == 0)
            for rt in range(2):
                acc = vACC + (rt * 11 + t) * 4
                xr = aX + ((b * 2 + ks) * 2 + rt) * 4
                c = "0" if first else vr(acc, 4)
                a(f"v_mfma_f32_16x16x32_bf16 {vr(acc,4)}, {vr(w,4)}, {ar(xr,4)}, {c}")
            if halo and t >= 3:
                acc = vACCH + (t - 3) * 4
                xr = aXH + (b * 2 + ks) * 4
                c = "0" if first else vr(acc, 4)
                a(f"v_mfma_f32_16x16x32_bf16 {vr(acc,4)}, {vr(w,4)}, {ar(xr,4)}, {c}")

    def stage_to_lds(isB):
        a("s_nop 7\ns_barrier")
        rowshift = 1024 if isB else 0
        for rt in range(2):
            for t in range(11):
                acc = vACC + (rt * 11 + t) * 4
                a(f"v_cvt_pk_bf16_f32 {vr(acc)}, {vr(acc)}, {vr(acc+1)}")
                a(f"v_cvt_pk_bf16_f32 {vr(acc+1)}, {vr(acc+2)}, {vr(acc+3)}")
                a(f"ds_write_b64 {vr(vEP+t)}, {vr(acc,2)} offset:{rowshift + rt*1024}")
        if isB:
            skip = a.newlabel("P1_nohalo")
            a(f"s_cmp_lg_u32 s{sWAVE}, 0\ns_cbranch_scc1 {skip}")
            for t in range(3, 11):
                acc = vACCH + (t - 3) * 4
                a(f"v_cvt_pk_bf16_f32 {vr(acc)}, {vr(acc)}, {vr(acc+1)}")
                a(f"v_cvt_pk_bf16_f32 {vr(acc+1)}, {vr(acc+2)}, {vr(acc+3)}")
                a(f"ds_write_b64 {vr(vEP+t)}, {vr(acc,2)} offset:0")
            a(f"""
            v_and_b32 {vr(vT0)}, 15, {vr(vLANE)}
            v_lshrrev_b32 {vr(vT1)}, 2, {vr(vT0)}
            """)
            sigma_code(a, vT2, vT1, vT3)
            a(f"""
            v_xor_b32 {vr(vT2)}, 3, {vr(vT2)}
            v_lshlrev_b32 {vr(vT2)}, 4, {vr(vT2)}
            v_lshlrev_b32 {vr(vT0)}, 6, {vr(vT0)}
            v_add_u32 {vr(vT2)}, {vr(vT2)}, {vr(vT0)}
            v_lshrrev_b32 {vr(vT1)}, 4, {vr(vLANE)}
            v_add_u32 {vr(vT1)}, 2, {vr(vT1)}
            v_mul_u32_u24 {vr(vT3)}, {144*64}, {vr(vT1)}
            v_add_u32 {vr(vT2)}, {vr(vT2)}, {vr(vT3)}
            v_add_u32 {vr(vT2)}, 8, {vr(vT2)}
            v_mov_b32 {vr(vT0)}, 0x3f80
            v_cmp_lt_u32 vcc, 3, {vr(vT1)}
            s_nop 1
            v_cndmask_b32 {vr(vMISC)}, 0, {vr(vT0)}, vcc
            v_mov_b32 {vr(vMISC+1)}, 0
            ds_write_b64 {vr(vT2)}, {vr(vMISC,2)}
            """)
            a.label(skip)
        slotsz = (144 if isB else 128) * 64
        a(f"""
        v_and_b32 {vr(vT0)}, 31, {vr(vLANE)}
        v_bfe_u32 {vr(vT1)}, {vr(vLANE)}, 2, 2
        """)
        sigma_code(a, vT2, vT1, vT3)
        a(f"""
        v_xor_b32 {vr(vT2)}, 3, {vr(vT2)}
        v_lshlrev_b32 {vr(vT2)}, 4, {vr(vT2)}
        s_lshl_b32 s{sT0}, s{sWAVE}, 5
        v_add_u32 {vr(vT0)}, s{sT0}, {vr(vT0)}
        v_lshlrev_b32 {vr(vT0)}, 6, {vr(vT0)}
        v_add_u32 {vr(vT2)}, {vr(vT2)}, {vr(vT0)}
        v_lshrrev_b32 {vr(vT1)}, 5, {vr(vLANE)}
        v_mul_u32_u24 {vr(vT3)}, {slotsz}, {vr(vT1)}
        v_add_u32 {vr(vT2)}, {vr(vT2)}, {vr(vT3)}
        v_add_u32 {vr(vT2)}, {8 + rowshift}, {vr(vT2)}
        v_mov_b32 {vr(vMISC+1)}, 0
        """)
        for i in range(3):
            if isB:
                val = 0 if i == 1 else 0x3f80
                a(f"v_mov_b32 {vr(vMISC)}, {val}")
            else:
                a(f"""
                s_mul_i32 s{sT0}, s{sCB}, 6
                s_add_u32 s{sT0}, s{sT0}, {2*i}
                v_add_u32 {vr(vT0)}, s{sT0}, {vr(vT1)}
                v_lshrrev_b32 {vr(vT0)}, 4, {vr(vT0)}
                v_mov_b32 {vr(vT3)}, 0x3f80
                v_cmp_ne_u32 vcc, 1, {vr(vT0)}
                s_nop 1
                v_cndmask_b32 {vr(vMISC)}, 0, {vr(vT3)}, vcc
                """)
            a(f"ds_write_b64 {vr(vT2)}, {vr(vMISC,2)} offset:{2*i*slotsz}")
        a("s_waitcnt lgkmcnt(0)\ns_barrier")
        stamp(a, "staged")

    LB, LP2 = "P1_B", "P2_START"
    make_srd(a, sWS, pWS, WS_USED)
    a(f"s_cmp_eq_u32 s{sBR}, 1\ns_cbranch_scc1 {LB}")
    for b in range(5): issue_block(b, False)
    stamp(a, "iss5")
    setup_lane_consts(False)
    stamp(a, "issued")
    main_loop(False)
    stamp(a, "gemm")
    stage_to_lds(False)
    a(f"""
    v_lshlrev_b32 {vr(vT0)}, 4, {vr(vLANE)}
    s_lshl_b32 s{sT0}, s{sWAVE}, 10
    v_add_u32 {vr(vT0)}, s{sT0}, {vr(vT0)}
    s_mul_i32 s{sT1}, s{sCB}, {6*SLOT}
    s_lshl_b32 s{sT2}, s{sRB}, 13
    s_add_u32 s{sT1}, s{sT1}, s{sT2}
    """)
    for i in range(12):
        r = vACC + i * 4
        a(f"ds_read_b128 {vr(r,4)}, {vr(vT0)} offset:{i*4096}")
    for i in range(12):
        r = vACC + i * 4
        a(f"s_waitcnt lgkmcnt({11-i})")
        a(f"s_add_u32 s{sT2}, s{sT1}, {OFF_QKV + (i>>1)*SLOT + (i&1)*4096}")
        a(f"buffer_store_dwordx4 {vr(r,4)}, {vr(vT0)}, s[{sWS}:{sWS+3}], s{sT2} offen sc1")
    get_nonce(a, vNON, True)
    a(f"s_lshl_b32 s{sT0}, s{sRB}, 7\ns_lshl_b32 s{sT1}, s{sCB}, 2\ns_add_u32 s{sT0}, s{sT0}, s{sT1}\ns_add_u32 s{sT0}, s{sT0}, {F1}")
    publish_flag(a, sT0, vT0, vT1)
    stamp(a, "pub1")
    a(f"s_mov_b32 s59, 1")
    a(f"s_cmp_eq_u32 s{sWAVE}, 0\ns_cbranch_scc1 {LP2}")
    wo_dma(a, vT3, vT0, vT1, vT2, None, sT0, sT1, sT2, 40, 44)
    a(f"s_mov_b32 s59, 0")
    a(f"s_branch {LP2}")

    a.label(LB)
    for b in range(5): issue_block(b, True)
    stamp(a, "iss5")
    setup_lane_consts(True)
    stamp(a, "issued")
    main_loop(True)
    stamp(a, "gemm")
    stage_to_lds(True)
    get_nonce(a, vNON, True)
    SL = 144 * 64
    vQA, vVA0, vVA1, vOA = 168, 169, 170, 171
    vMa, vMb, vMa0 = 172, 176, 180
    vQ, vKa, vKb = 184, 188, 192
    vSa, vSb = 196, 200
    vV0, vV1 = 204, 208
    vO0, vO1 = 212, 216
    vM, vU0, vU1, vRI = 220, 221, 222, 223
    a(f"""
    v_and_b32 {vr(vT0)}, 15, {vr(vLANE)}
    v_lshrrev_b32 {vr(vT1)}, 2, {vr(vT0)}
    """)
    sigma_code(a, vT2, vT1, vT3)
    a(f"""
    v_lshrrev_b32 {vr(vT1)}, 4, {vr(vLANE)}
    v_xor_b32 {vr(vT2)}, {vr(vT2)}, {vr(vT1)}
    v_lshlrev_b32 {vr(vT2)}, 4, {vr(vT2)}
    s_lshl_b32 s{sT0}, s{sWAVE}, 5
    v_add_u32 {vr(vT3)}, s{sT0}, {vr(vT0)}
    v_lshlrev_b32 {vr(vT3)}, 6, {vr(vT3)}
    v_add_u32 {vr(vQA)}, {vr(vT2)}, {vr(vT3)}
    """)
    sigma_code(a, vT2, vT1, vT3)
    a(f"""
    v_bfe_u32 {vr(vT3)}, {vr(vLANE)}, 1, 1
    v_xor_b32 {vr(vT2)}, {vr(vT2)}, {vr(vT3)}
    v_lshlrev_b32 {vr(vT2)}, 4, {vr(vT2)}
    v_and_b32 {vr(vT3)}, 1, {vr(vLANE)}
    v_lshlrev_b32 {vr(vT3)}, 3, {vr(vT3)}
    v_add_u32 {vr(vT2)}, {vr(vT2)}, {vr(vT3)}
    v_lshlrev_b32 {vr(vT3)}, 2, {vr(vT1)}
    v_bfe_u32 {vr(vVA0)}, {vr(vLANE)}, 2, 2
    v_add_u32 {vr(vT3)}, {vr(vT3)}, {vr(vVA0)}
    s_lshl_b32 s{sT0}, s{sWAVE}, 5
    v_add_u32 {vr(vT3)}, s{sT0}, {vr(vT3)}
    v_lshlrev_b32 {vr(vT3)}, 6, {vr(vT3)}
    v_add_u32 {vr(vVA0)}, {vr(vT2)}, {vr(vT3)}
    v_xor_b32 {vr(vVA1)}, 32, {vr(vVA0)}
    """)
    a(f"""
    v_and_b32 {vr(vT0)}, 15, {vr(vLANE)}
    v_lshlrev_b32 {vr(vT2)}, 2, {vr(vT1)}
    v_sub_u32 {vr(vT0)}, {vr(vT0)}, {vr(vT2)}
    v_mov_b32 {vr(vT3)}, {NEG_INF}
    """)
    for r in range(4):
        a(f"""
        v_subrev_u32 {vr(vT2)}, {r}, {vr(vT0)}
        v_and_b32 {vr(vU0)}, 0xfffffff1, {vr(vT2)}
        v_cmp_eq_u32 vcc, 0, {vr(vU0)}
        s_nop 1
        v_cndmask_b32 {vr(vMb+r)}, {vr(vT3)}, 0, vcc
        v_add_u32 {vr(vT2)}, 16, {vr(vT2)}
        v_and_b32 {vr(vU0)}, 0xfffffff1, {vr(vT2)}
        v_cmp_eq_u32 vcc, 0, {vr(vU0)}
        s_nop 1
        v_cndmask_b32 {vr(vMa+r)}, {vr(vT3)}, 0, vcc
        v_mov_b32 {vr(vMa0+r)}, {vr(vMa+r)}
        """)
    lab = a.newlabel("P1_m0")
    a(f"s_or_b32 s{sT0}, s{sRB}, s{sWAVE}\ns_cmp_lg_u32 s{sT0}, 0\ns_cbranch_scc1 {lab}")
    for r in range(4): a(f"v_mov_b32 {vr(vMa0+r)}, {vr(vT3)}")
    a.label(lab)
    a(f"""
    v_and_b32 {vr(vT0)}, 15, {vr(vLANE)}
    s_lshl_b32 s{sT0}, s{sRB}, 7
    s_lshl_b32 s{sT1}, s{sWAVE}, 5
    s_add_u32 s{sT0}, s{sT0}, s{sT1}
    v_add_u32 {vr(vT0)}, s{sT0}, {vr(vT0)}
    v_lshlrev_b32 {vr(vT0)}, 6, {vr(vT0)}
    v_and_b32 {vr(vT2)}, 1, {vr(vT1)}
    v_lshlrev_b32 {vr(vT2)}, 5, {vr(vT2)}
    v_lshrrev_b32 {vr(vT3)}, 1, {vr(vT1)}
    v_lshlrev_b32 {vr(vT3)}, 4, {vr(vT3)}
    v_add3_u32 {vr(vOA)}, {vr(vT0)}, {vr(vT2)}, {vr(vT3)}
    s_lshl_b32 s{sT0}, s{sCB}, 1
    s_add_u32 s{sT0}, s{sT0}, 16
    s_mul_i32 s{sT0}, s{sT0}, {SLOT}
    s_add_u32 s{sT0}, s{sT0}, {OFF_O}
    s_mov_b32 s{sT1}, {f2u(SCALE_LOG2E)}
    """)
    for hh in range(2):
        for rt in range(2):
            T = 1 + rt
            a(f"ds_read_b128 {vr(vQ,4)}, {vr(vQA)} offset:{(0+hh)*SL + T*1024}")
            a(f"ds_read_b128 {vr(vKa,4)}, {vr(vQA)} offset:{(2+hh)*SL + (T-1)*1024}")
            a(f"ds_read_b128 {vr(vKb,4)}, {vr(vQA)} offset:{(2+hh)*SL + T*1024}")
            for dt, (va, vv) in enumerate(((vVA0, vV0), (vVA1, vV1))):
                a(f"ds_read_b64_tr_b16 {vr(vv,2)}, {vr(va)} offset:{(4+hh)*SL + (T-1)*1024}")
                a(f"ds_read_b64_tr_b16 {vr(vv+2,2)}, {vr(va)} offset:{(4+hh)*SL + T*1024}")
            a("s_waitcnt lgkmcnt(4)")
            ma = vMa0 if rt == 0 else vMa
            a(f"v_mfma_f32_16x16x32_bf16 {vr(vSa,4)}, {vr(vKa,4)}, {vr(vQ,4)}, {vr(ma,4)}")
            a(f"v_mfma_f32_16x16x32_bf16 {vr(vSb,4)}, {vr(vKb,4)}, {vr(vQ,4)}, {vr(vMb,4)}")
            a("s_nop 7")
            a(f"""
            v_max3_f32 {vr(vM)}, {vr(vSa)}, {vr(vSa+1)}, {vr(vSa+2)}
            v_max3_f32 {vr(vM)}, {vr(vM)}, {vr(vSa+3)}, {vr(vSb)}
            v_max3_f32 {vr(vM)}, {vr(vM)}, {vr(vSb+1)}, {vr(vSb+2)}
            v_max_f32 {vr(vM)}, {vr(vM)}, {vr(vSb+3)}
            v_mov_b32 {vr(vU0)}, {vr(vM)}
            s_nop 1
            v_permlane32_swap_b32 {vr(vM)}, {vr(vU0)}
            s_nop 0
            v_max_f32 {vr(vM)}, {vr(vM)}, {vr(vU0)}
            v_mov_b32 {vr(vU0)}, {vr(vM)}
            s_nop 1
            v_permlane16_swap_b32 {vr(vM)}, {vr(vU0)}
            s_nop 0
            v_max_f32 {vr(vM)}, {vr(vM)}, {vr(vU0)}
            v_mul_f32 {vr(vM)}, s{sT1}, {vr(vM)}
            """)
            for r in range(8): a(f"v_fma_f32 {vr(vSa+r)}, {vr(vSa+r)}, s{sT1}, -{vr(vM)}")
            for r in range(8): a(f"v_exp_f32 {vr(vSa+r)}, {vr(vSa+r)}")
            a("s_nop 0")
            for j in range(4): a(f"v_cvt_pk_bf16_f32 {vr(vSa+j)}, {vr(vSa+2*j)}, {vr(vSa+2*j+1)}")
            a("s_waitcnt lgkmcnt(0)\ns_nop 1")
            a(f"v_mfma_f32_16x16x32_bf16 {vr(vO0,4)}, {vr(vV0,4)}, {vr(vSa,4)}, 0")
            a(f"v_mfma_f32_16x16x32_bf16 {vr(vO1,4)}, {vr(vV1,4)}, {vr(vSa,4)}, 0")
            a("s_nop 7")
            a(f"""
            v_mov_b32 {vr(vU0)}, {vr(vO1)}
            v_mov_b32 {vr(vU1)}, {vr(vO1)}
            s_nop 1
            v_permlane32_swap_b32 {vr(vU0)}, {vr(vU1)}
            v_mov_b32 {vr(vU0)}, {vr(vU1)}
            s_nop 1
            v_permlane16_swap_b32 {vr(vU0)}, {vr(vU1)}
            s_nop 0
            v_rcp_f32 {vr(vRI)}, {vr(vU1)}
            v_cmp_gt_u32 vcc, 48, {vr(vLANE)}
            s_nop 1
            v_cndmask_b32 {vr(vU0)}, 0, {vr(vRI)}, vcc
            """)
            for r in range(4):
                a(f"v_mul_f32 {vr(vO0+r)}, {vr(vO0+r)}, {vr(vRI)}")
                a(f"v_mul_f32 {vr(vO1+r)}, {vr(vO1+r)}, {vr(vU0)}")
            a(f"""
            v_cvt_pk_bf16_f32 {vr(vO0)}, {vr(vO0)}, {vr(vO0+1)}
            v_cvt_pk_bf16_f32 {vr(vO0+1)}, {vr(vO0+2)}, {vr(vO0+3)}
            v_cvt_pk_bf16_f32 {vr(vO0+2)}, {vr(vO1)}, {vr(vO1+1)}
            v_cvt_pk_bf16_f32 {vr(vO0+3)}, {vr(vO1+2)}, {vr(vO1+3)}
            s_nop 1
            v_permlane16_swap_b32 {vr(vO0)}, {vr(vO0+2)}
            v_permlane16_swap_b32 {vr(vO0+1)}, {vr(vO0+3)}
            s_add_u32 s{sT2}, s{sT0}, {hh*SLOT + rt*1024}
            s_nop 0
            buffer_store_dwordx4 {vr(vO0,4)}, {vr(vOA)}, s[{sWS}:{sWS+3}], s{sT2} offen sc1
            s_nop 1
            """)
    a(f"s_lshl_b32 s{sT0}, s{sRB}, 7\ns_lshl_b32 s{sT1}, s{sCB}, 2\ns_add_u32 s{sT0}, s{sT0}, s{sT1}\ns_add_u32 s{sT0}, s{sT0}, {F2B}")
    publish_flag(a, sT0, vT0, vT1)
    stamp(a, "pub1")
    a(f"s_mov_b32 s59, 1")
    a.label(LP2)

def gen_p2(a):
    sQ, sK, sV, sO = 4, 8, 12, 16
    sHD, sI, sT0, sT1, sT2, sC = 21, 22, 23, 24, 25, 26
    vT0, vT1, vT2, vT3 = 2, 3, 4, 5
    vKA0, vKA1, vVA0, vVA1, vDM, vOA = 6, 7, 8, 9, 10, 11
    vQ = 12
    vKF = 20
    vVF = 36
    vO = 52
    vM, vU0, vU1, vMC = 68, 69, 70, 72
    vS = 76
    a(f"""
    s_lshr_b32 s{sHD}, s{sIDX}, 4
    s_lshl_b32 s{sT0}, s{sXCD}, 1
    s_add_u32 s{sHD}, s{sHD}, s{sT0}
    s_and_b32 s{sI}, s{sIDX}, 15
    s_mul_i32 s{sT0}, s{sHD}, {SLOT}
    """)
    for srd, part in ((sQ, 0), (sK, 1), (sV, 2)):
        a(f"s_add_u32 s{sT1}, s{sT0}, {OFF_QKV + part*16*SLOT}")
        a(f"s_add_u32 s{srd}, s{pWS}, s{sT1}\ns_addc_u32 s{srd+1}, s{pWS+1}, 0\ns_mov_b32 s{srd+2}, {SLOT}\ns_mov_b32 s{srd+3}, 0x20000")
    a(f"s_add_u32 s{sT1}, s{sT0}, {OFF_O}")
    a(f"s_add_u32 s{sO}, s{pWS}, s{sT1}\ns_addc_u32 s{sO+1}, s{pWS+1}, 0\ns_mov_b32 s{sO+2}, {SLOT}\ns_mov_b32 s{sO+3}, 0x20000")
    a(f"""
    s_lshl_b32 s{sT0}, s{sI}, 13
    s_sub_u32 s{sT0}, s{sT0}, 16384
    s_lshl_b32 s{sT1}, s{sWAVE}, 10
    s_add_u32 s{sT0}, s{sT0}, s{sT1}
    v_lshlrev_b32 {vr(vDM)}, 4, {vr(vLANE)}
    v_add_u32 {vr(vDM)}, s{sT0}, {vr(vDM)}
    v_and_b32 {vr(vT0)}, 31, {vr(vLANE)}
    v_bfe_u32 {vr(vT1)}, {vr(vLANE)}, 2, 2
    """)
    sigma_code(a, vT2, vT1, vT3)
    a(f"""
    v_lshrrev_b32 {vr(vT1)}, 5, {vr(vLANE)}
    v_xor_b32 {vr(vT2)}, {vr(vT2)}, {vr(vT1)}
    v_lshlrev_b32 {vr(vT2)}, 4, {vr(vT2)}
    s_lshl_b32 s{sT0}, s{sWAVE}, 5
    v_add_u32 {vr(vT3)}, s{sT0}, {vr(vT0)}
    v_lshlrev_b32 {vr(vT3)}, 6, {vr(vT3)}
    v_add_u32 {vr(vKA0)}, {vr(vT2)}, {vr(vT3)}
    v_xor_b32 {vr(vKA1)}, 32, {vr(vKA0)}
    """)
    for idx, (va, radd) in enumerate(((vVA0, 0), (vVA1, 2))):
        a(f"""
        v_lshrrev_b32 {vr(vT0)}, 5, {vr(vLANE)}
        v_add_u32 {vr(vT1)}, {radd}, {vr(vT0)}
        """)
        sigma_code(a, vT2, vT1, vT3)
        a(f"""
        v_bfe_u32 {vr(vT3)}, {vr(vLANE)}, 4, 1
        v_lshlrev_b32 {vr(vT3)}, 1, {vr(vT3)}
        v_xor_b32 {vr(vT2)}, {vr(vT2)}, {vr(vT3)}
        v_bfe_u32 {vr(vT3)}, {vr(vLANE)}, 1, 1
        v_xor_b32 {vr(vT2)}, {vr(vT2)}, {vr(vT3)}
        v_lshlrev_b32 {vr(vT2)}, 4, {vr(vT2)}
        v_and_b32 {vr(vT3)}, 1, {vr(vLANE)}
        v_lshlrev_b32 {vr(vT3)}, 3, {vr(vT3)}
        v_add_u32 {vr(vT2)}, {vr(vT2)}, {vr(vT3)}
        v_lshlrev_b32 {vr(vT1)}, 2, {vr(vT1)}
        v_bfe_u32 {vr(vT3)}, {vr(vLANE)}, 2, 2
        v_add_u32 {vr(vT1)}, {vr(vT1)}, {vr(vT3)}
        s_lshl_b32 s{sT0}, s{sWAVE}, 5
        v_add_u32 {vr(vT1)}, s{sT0}, {vr(vT1)}
        v_lshlrev_b32 {vr(vT1)}, 6, {vr(vT1)}
        v_add_u32 {vr(va)}, {vr(vT2)}, {vr(vT1)}
        v_add_u32 {vr(va)}, {VB}, {vr(va)}
        """)
    a(f"""
    v_and_b32 {vr(vT0)}, 31, {vr(vLANE)}
    v_lshrrev_b32 {vr(vT1)}, 5, {vr(vLANE)}
    v_lshlrev_b32 {vr(vT1)}, 2, {vr(vT1)}
    v_sub_u32 {vr(vT0)}, {vr(vT0)}, {vr(vT1)}
    v_mov_b32 {vr(vT3)}, {NEG_INF}
    """)
    for r in range(16):
        kr = 8 * (r >> 2) + (r & 3)
        a(f"""
        v_cmp_gt_i32 vcc, {kr}, {vr(vT0)}
        s_nop 1
        v_cndmask_b32 {vr(vS+r)}, {vr(vT3)}, 0, vcc
        v_cndmask_b32 {vr(vS+128+r)}, 0, {vr(vT3)}, vcc
        """)
    a(f"s_mov_b32 s{sC}, {f2u(SCALE_LOG2E)}\ns_mov_b32 s{sC+1}, {f2u(SCALE_LOG2E)}")
    a(f"""
    v_lshrrev_b32 {vr(vT0)}, 3, {vr(vLANE)}
    v_add_u32 {vr(vT0)}, s{sI}, {vr(vT0)}
    v_subrev_u32 {vr(vT0)}, 2, {vr(vT0)}
    v_max_i32 {vr(vT0)}, 0, {vr(vT0)}
    v_lshlrev_b32 {vr(vT0)}, 7, {vr(vT0)}
    v_and_b32 {vr(vT1)}, 7, {vr(vLANE)}
    v_lshlrev_b32 {vr(vT1)}, 2, {vr(vT1)}
    v_add3_u32 {vr(vT0)}, {vr(vT0)}, {vr(vT1)}, {F1}
    """)
    poll_flags(a, vT0, 24, vT1)
    stamp(a, "flag1")
    a(f"s_lshl_b32 s{sT1}, s{sWAVE}, 10")
    for j in range(6):
        a(f"s_add_u32 s{sT2}, s{sT1}, {KB + j*4096}\ns_mov_b32 m0, s{sT2}\ns_nop 0")
        a(f"buffer_load_dwordx4 {vr(vDM)}, s[{sK}:{sK+3}], 0 offen sc1 lds")
        a(f"s_add_u32 s{sT2}, s{sT1}, {VB + j*4096}\ns_mov_b32 m0, s{sT2}\ns_nop 0")
        a(f"buffer_load_dwordx4 {vr(vDM)}, s[{sV}:{sV+3}], 0 offen sc1 lds")
        if j < 5: a(f"v_add_u32 {vr(vDM)}, 4096, {vr(vDM)}")
    a(f"""
    s_lshl_b32 s{sT0}, s{sI}, 13
    v_add_u32 {vr(vT0)}, s{sT0}, {vr(vKA0)}
    v_add_u32 {vr(vT1)}, s{sT0}, {vr(vKA1)}
    buffer_load_dwordx4 {vr(vQ,4)}, {vr(vT0)}, s[{sQ}:{sQ+3}], 0 offen sc1
    buffer_load_dwordx4 {vr(vQ+4,4)}, {vr(vT1)}, s[{sQ}:{sQ+3}], 0 offen sc1
    """)
    L1 = a.newlabel("P2_wo"); L2 = L1 + "_j"
    a(f"s_cmp_eq_u32 s59, 0\ns_cbranch_scc1 {L1}")
    wo_dma(a, vT3, vT0, vT1, vT2, None, sT0, sT1, sT2, 40, 44)
    a(f"s_waitcnt vmcnt(32)\ns_branch {L2}")
    a.label(L1)
    a("s_waitcnt vmcnt(0)")
    a.label(L2)
    lab = a.newlabel("P2_nopatch")
    a(f"s_cmp_ge_u32 s{sI}, 2\ns_cbranch_scc1 {lab}")
    a(f"v_lshrrev_b32 {vr(vT0)}, 4, {vr(vLANE)}")
    sigma_code(a, vT1, vT0, vT2)
    a(f"""
    v_xor_b32 {vr(vT1)}, 3, {vr(vT1)}
    v_and_b32 {vr(vT2)}, 3, {vr(vLANE)}
    v_cmp_eq_u32 vcc, {vr(vT1)}, {vr(vT2)}
    v_lshlrev_b32 {vr(vT0)}, 4, {vr(vLANE)}
    s_lshl_b32 s{sT1}, s{sWAVE}, 10
    v_add_u32 {vr(vT0)}, s{sT1}, {vr(vT0)}
    v_mov_b32 {vr(vT2)}, 0xf14a
    s_and_saveexec_b64 s[28:29], vcc
    """)
    for j in range(4):
        if j == 2: a(f"s_cmp_eq_u32 s{sI}, 1\ns_cbranch_scc1 {lab}_r")
        a(f"ds_write_b32 {vr(vT0)}, {vr(vT2)} offset:{KB + j*4096 + 8}")
    a.label(lab + "_r")
    a("s_mov_b64 exec, s[28:29]\ns_waitcnt lgkmcnt(0)")
    a.label(lab)
    a("s_barrier")
    stamp(a, "kv")
    steps = [(kt, ks) for kt in range(9) for ks in range(2)]
    def kread(i):
        kt, ks = steps[i]
        a(f"ds_read_b128 {vr(vKF + (i%4)*4,4)}, {vr(vKA0 if ks == 0 else vKA1)} offset:{KB + kt*2048}")
    for i in range(3): kread(i)
    for i, (kt, ks) in enumerate(steps):
        if i + 3 < len(steps): kread(i + 3)
        a(f"s_waitcnt lgkmcnt({min(3, len(steps)-1-i)})")
        sreg = vS + kt * 16
        c = (vr(sreg, 16) if kt in (0, 8) else "0") if ks == 0 else vr(sreg, 16)
        a(f"v_mfma_f32_32x32x16_bf16 {vr(sreg,16)}, {vr(vKF+(i%4)*4,4)}, {vr(vQ+4*ks,4)}, {c}")
    a("s_nop 15")
    stamp(a, "qk")
    a(f"v_max3_f32 {vr(vM)}, {vr(vS)}, {vr(vS+1)}, {vr(vS+2)}")
    r = 3
    while r + 1 < 144:
        a(f"v_max3_f32 {vr(vM)}, {vr(vM)}, {vr(vS+r)}, {vr(vS+r+1)}")
        r += 2
    a(f"v_max_f32 {vr(vM)}, {vr(vM)}, {vr(vS+143)}")
    a(f"""
    v_mov_b32 {vr(vU0)}, {vr(vM)}
    s_nop 1
    v_permlane32_swap_b32 {vr(vM)}, {vr(vU0)}
    s_nop 0
    v_max_f32 {vr(vM)}, {vr(vM)}, {vr(vU0)}
    v_mul_f32 {vr(vMC)}, s{sC}, {vr(vM)}
    """)
    vsteps = [(kt, u) for kt in range(9) for u in range(2)]
    def vread(i):
        kt, u = vsteps[i]
        w = vVF + (i % 4) * 4
        a(f"ds_read_b64_tr_b16 {vr(w,2)}, {vr(vVA0)} offset:{kt*2048 + u*1024}")
        a(f"ds_read_b64_tr_b16 {vr(w+2,2)}, {vr(vVA1)} offset:{kt*2048 + u*1024}")
    for i in range(3): vread(i)
    for kt in range(9):
        sreg = vS + kt * 16
        for j in range(8):
            a(f"v_pk_fma_f32 {vr(sreg+2*j,2)}, {vr(sreg+2*j,2)}, s[{sC}:{sC+1}], {vr(vMC,2)} op_sel_hi:[1,0,0] neg_lo:[0,0,1] neg_hi:[0,0,1]")
        for r in range(16): a(f"v_exp_f32 {vr(sreg+r)}, {vr(sreg+r)}")
        a("s_nop 0")
        for j in range(8): a(f"v_cvt_pk_bf16_f32 {vr(sreg+j)}, {vr(sreg+2*j)}, {vr(sreg+2*j+1)}")
        for u in range(2):
            i = kt * 2 + u
            if i + 3 < len(vsteps): vread(i + 3)
            a(f"s_waitcnt lgkmcnt({2*min(3, len(vsteps)-1-i)})")
            c = "0" if i == 0 else vr(vO, 16)
            a(f"v_mfma_f32_32x32x16_bf16 {vr(vO,16)}, {vr(vVF+(i%4)*4,4)}, {vr(sreg+4*u,4)}, {c}")
    a("s_nop 15")
    a(f"""
    v_mov_b32 {vr(vU0)}, {vr(vO+12)}
    v_mov_b32 {vr(vU1)}, {vr(vO+12)}
    s_nop 1
    v_permlane32_swap_b32 {vr(vU0)}, {vr(vU1)}
    s_nop 0
    v_rcp_f32 {vr(vU1)}, {vr(vU1)}
    v_cmp_gt_u32 vcc, 32, {vr(vLANE)}
    s_nop 1
    v_cndmask_b32 {vr(vU0)}, 0, {vr(vU1)}, vcc
    """)
    for r in range(16): a(f"v_mul_f32 {vr(vO+r)}, {vr(vO+r)}, {vr(vU1 if r < 12 else vU0)}")
    for j in range(8): a(f"v_cvt_pk_bf16_f32 {vr(vO+j)}, {vr(vO+2*j)}, {vr(vO+2*j+1)}")
    a(f"""
    s_nop 1
    v_permlane32_swap_b32 {vr(vO)}, {vr(vO+2)}
    v_permlane32_swap_b32 {vr(vO+1)}, {vr(vO+3)}
    v_permlane32_swap_b32 {vr(vO+4)}, {vr(vO+6)}
    v_permlane32_swap_b32 {vr(vO+5)}, {vr(vO+7)}
    s_nop 1
    v_permlane16_swap_b32 {vr(vO)}, {vr(vO+4)}
    v_permlane16_swap_b32 {vr(vO+1)}, {vr(vO+5)}
    v_permlane16_swap_b32 {vr(vO+2)}, {vr(vO+6)}
    v_permlane16_swap_b32 {vr(vO+3)}, {vr(vO+7)}
    v_and_b32 {vr(vT0)}, 15, {vr(vLANE)}
    s_lshl_b32 s{sT0}, s{sI}, 7
    s_lshl_b32 s{sT1}, s{sWAVE}, 5
    s_add_u32 s{sT0}, s{sT0}, s{sT1}
    v_add_u32 {vr(vT0)}, s{sT0}, {vr(vT0)}
    v_lshlrev_b32 {vr(vT0)}, 6, {vr(vT0)}
    v_bfe_u32 {vr(vT1)}, {vr(vLANE)}, 4, 1
    v_lshlrev_b32 {vr(vT1)}, 5, {vr(vT1)}
    v_bfe_u32 {vr(vT2)}, {vr(vLANE)}, 5, 1
    v_lshlrev_b32 {vr(vT2)}, 4, {vr(vT2)}
    v_add3_u32 {vr(vOA)}, {vr(vT0)}, {vr(vT1)}, {vr(vT2)}
    buffer_store_dwordx4 {vr(vO,4)}, {vr(vOA)}, s[{sO}:{sO+3}], 0 offen sc1
    buffer_store_dwordx4 {vr(vO+4,4)}, {vr(vOA)}, s[{sO}:{sO+3}], 0 offen offset:1024 sc1
    """)
    stamp(a, "att")
    a(f"s_lshl_b32 s{sT0}, s{sI}, 7\ns_lshl_b32 s{sT1}, s{sHD}, 2\ns_add_u32 s{sT0}, s{sT0}, s{sT1}\ns_add_u32 s{sT0}, s{sT0}, {F2A}")
    publish_flag(a, sT0, vT0, vT1)
    stamp(a, "pub2")

def gen_p3(a):
    sX, sO, sOUT, sG = 4, 16, 20, 24
    sRB, sCB, sT0, sT1, sT2 = 29, 30, 31, 32, 33
    vT0, vT1, vT2, vT3 = 2, 3, 4, 5
    vTRA, vTRB, vOL, vXL, vGL, vOUT = 7, 8, 9, 10, 11, 12
    vWF = 16
    NRING = 6
    vAA, vAB = 40, 56
    vG = 72
    vGW = 76
    aO = 0
    aX = 128
    a(f"""
    s_lshl_b32 s{sRB}, s{sXCD}, 2
    s_lshr_b32 s{sT2}, s{sIDX}, 3
    s_add_u32 s{sRB}, s{sRB}, s{sT2}
    s_and_b32 s{sCB}, s{sIDX}, 7
    """)
    make_srd(a, sX, pX, S * XROW)
    make_srd(a, sG, pGW, 896)
    make_srd(a, sOUT, pOUT, S * 896)
    make_srd(a, sO, pWS, 32 * SLOT, OFF_O)
    a(f"""
    v_and_b32 {vr(vT0)}, 15, {vr(vLANE)}
    s_lshl_b32 s{sT0}, s{sRB}, 6
    s_lshl_b32 s{sT1}, s{sWAVE}, 4
    s_add_u32 s{sT0}, s{sT0}, s{sT1}
    v_add_u32 {vr(vT0)}, s{sT0}, {vr(vT0)}
    v_lshrrev_b32 {vr(vT1)}, 4, {vr(vLANE)}
    v_lshlrev_b32 {vr(vGL)}, 4, {vr(vT1)}
    v_lshlrev_b32 {vr(vT2)}, 6, {vr(vT0)}
    v_add_u32 {vr(vOL)}, {vr(vT2)}, {vr(vGL)}
    v_mul_u32_u24 {vr(vT2)}, 896, {vr(vT0)}
    v_add_u32 {vr(vXL)}, {vr(vT2)}, {vr(vGL)}
    v_and_b32 {vr(vT3)}, 1, {vr(vT1)}
    v_lshlrev_b32 {vr(vT3)}, 5, {vr(vT3)}
    v_lshrrev_b32 {vr(vT1)}, 1, {vr(vT1)}
    v_lshlrev_b32 {vr(vT1)}, 4, {vr(vT1)}
    v_add3_u32 {vr(vOUT)}, {vr(vT2)}, {vr(vT3)}, {vr(vT1)}
    s_mul_i32 s{sT1}, s{sCB}, 112
    v_add_u32 {vr(vOUT)}, s{sT1}, {vr(vOUT)}
    """)
    for ks in range(14):
        a(f"buffer_load_dwordx4 {ar(aX+ks*4,4)}, {vr(vXL)}, s[{sX}:{sX+3}], 0 offen offset:{64*ks}")
        a(f"buffer_load_dwordx4 {vr(vGW+ks*4,4)}, {vr(vGL)}, s[{sG}:{sG+3}], 0 offen offset:{64*ks}")
    a(f"""
    v_lshrrev_b32 {vr(vT0)}, 4, {vr(vLANE)}
    v_and_b32 {vr(vT1)}, 1, {vr(vT0)}
    v_lshlrev_b32 {vr(vT1)}, 3, {vr(vT1)}
    v_lshrrev_b32 {vr(vT2)}, 1, {vr(vT0)}
    v_add_u32 {vr(vT1)}, {vr(vT1)}, {vr(vT2)}
    v_bfe_u32 {vr(vT2)}, {vr(vLANE)}, 2, 2
    v_lshlrev_b32 {vr(vT2)}, 1, {vr(vT2)}
    v_add_u32 {vr(vT1)}, {vr(vT1)}, {vr(vT2)}
    v_mul_u32_u24 {vr(vT1)}, 112, {vr(vT1)}
    v_and_b32 {vr(vT2)}, 3, {vr(vLANE)}
    v_lshlrev_b32 {vr(vT3)}, 3, {vr(vT2)}
    v_add_u32 {vr(vTRA)}, {vr(vT1)}, {vr(vT3)}
    v_add_u32 {vr(vTRA)}, {WOB}, {vr(vTRA)}
    v_add_u32 {vr(vTRB)}, {16*3584}, {vr(vTRA)}
    """)
    a(f"""
    s_lshr_b32 s{sT0}, s{sRB}, 1
    s_lshl_b32 s{sT0}, s{sT0}, 7
    s_add_u32 s{sT1}, s{sT0}, {F2B}
    v_lshlrev_b32 {vr(vT0)}, 2, {vr(vLANE)}
    v_add_u32 {vr(vT0)}, s{sT1}, {vr(vT0)}
    """)
    poll_flags(a, vT0, 8, vT1)
    stamp(a, "flagB")
    order = [(1, h) for h in range(16)] + [(0, h) for h in range(16)]
    def oload(i):
        br, h = order[i]
        a(f"s_mov_b32 s{sT2}, {(br*16+h)*SLOT}")
        a(f"buffer_load_dwordx4 {ar(aO+i*4,4)}, {vr(vOL)}, s[{sO}:{sO+3}], s{sT2} offen sc1")
    for i in range(16): oload(i)
    a("s_waitcnt vmcnt(16)")
    a("s_barrier")
    stamp(a, "gateld")
    for ks in range(14):
        c = "0" if ks == 0 else vr(vG, 4)
        a(f"v_mfma_f32_16x16x32_bf16 {vr(vG,4)}, {vr(vGW+ks*4,4)}, {ar(aX+ks*4,4)}, {c}")
    PF = NRING - 1
    def half(i0):
        steps = [(i, t) for i in range(i0, i0 + 16) for t in range(4)]
        def rd(n):
            i, t = steps[n]
            br, h = order[i]
            va = vTRB if br == 1 else vTRA
            w = vWF + (n % NRING) * 4
            a(f"ds_read_b64_tr_b16 {vr(w,2)}, {vr(va)} offset:{h*3584 + 32*t}")
            a(f"ds_read_b64_tr_b16 {vr(w+2,2)}, {vr(va)} offset:{h*3584 + 32*t + 1792}")
        for n in range(PF): rd(n)
        for n, (i, t) in enumerate(steps):
            if n + PF < len(steps): rd(n + PF)
            if t == 0: a(f"s_waitcnt vmcnt({i0+15-i})")
            a(f"s_waitcnt lgkmcnt({2*min(PF, len(steps)-1-n)})")
            br, h = order[i]
            acc = (vAB if br == 1 else vAA) + t * 4
            c = "0" if h == 0 else vr(acc, 4)
            a(f"v_mfma_f32_16x16x32_bf16 {vr(acc,4)}, {vr(vWF+(n%NRING)*4,4)}, {ar(aO+i*4,4)}, {c}")
    half(0)
    a(f"""
    v_mul_f32 {vr(vG)}, {f2u(-1.4426950408889634)}, {vr(vG)}
    v_exp_f32 {vr(vG)}, {vr(vG)}
    s_nop 0
    v_add_f32 {vr(vG)}, 1.0, {vr(vG)}
    v_rcp_f32 {vr(vG)}, {vr(vG)}
    """)
    stamp(a, "p3B")
    a(f"""
    s_lshr_b32 s{sT0}, s{sRB}, 1
    s_lshl_b32 s{sT0}, s{sT0}, 7
    s_add_u32 s{sT1}, s{sT0}, {F2A}
    v_lshlrev_b32 {vr(vT0)}, 2, {vr(vLANE)}
    v_add_u32 {vr(vT0)}, s{sT1}, {vr(vT0)}
    """)
    poll_flags(a, vT0, 16, vT1)
    stamp(a, "flag2")
    for i in range(16, 32): oload(i)
    steps = [(i, t) for i in range(16, 32) for t in range(4)]
    def rd(n):
        i, t = steps[n]
        br, h = order[i]
        w = vWF + (n % NRING) * 4
        a(f"ds_read_b64_tr_b16 {vr(w,2)}, {vr(vTRA)} offset:{h*3584 + 32*t}")
        a(f"ds_read_b64_tr_b16 {vr(w+2,2)}, {vr(vTRA)} offset:{h*3584 + 32*t + 1792}")
    for n in range(PF): rd(n)
    for n, (i, t) in enumerate(steps):
        if n + PF < len(steps): rd(n + PF)
        if t == 0: a(f"s_waitcnt vmcnt({31-i})")
        a(f"s_waitcnt lgkmcnt({2*min(PF, len(steps)-1-n)})")
        br, h = order[i]
        acc = vAA + t * 4
        c = "0" if h == 0 else vr(acc, 4)
        a(f"v_mfma_f32_16x16x32_bf16 {vr(acc,4)}, {vr(vWF+(n%NRING)*4,4)}, {ar(aO+i*4,4)}, {c}")
    a("s_nop 7")
    for t in range(4):
        for r in range(4):
            x, y = vAA + t * 4 + r, vAB + t * 4 + r
            a(f"v_sub_f32 {vr(x)}, {vr(x)}, {vr(y)}")
            a(f"v_fma_f32 {vr(x)}, {vr(x)}, {vr(vG)}, {vr(y)}")
    for p in range(2):
        x, y = vAA + (2 * p) * 4, vAA + (2 * p + 1) * 4
        d = vAB + p * 4
        a(f"""
        v_cvt_pk_bf16_f32 {vr(d)}, {vr(x)}, {vr(x+1)}
        v_cvt_pk_bf16_f32 {vr(d+1)}, {vr(x+2)}, {vr(x+3)}
        v_cvt_pk_bf16_f32 {vr(d+2)}, {vr(y)}, {vr(y+1)}
        v_cvt_pk_bf16_f32 {vr(d+3)}, {vr(y+2)}, {vr(y+3)}
        s_nop 1
        v_permlane16_swap_b32 {vr(d)}, {vr(d+2)}
        v_permlane16_swap_b32 {vr(d+1)}, {vr(d+3)}
        """)
    a(f"""
    s_nop 0
    buffer_store_dwordx4 {vr(vAB,4)}, {vr(vOUT)}, s[{sOUT}:{sOUT+3}], 0 offen
    s_mov_b32 exec_hi, 0x0000ffff
    buffer_store_dwordx4 {vr(vAB+4,4)}, {vr(vOUT)}, s[{sOUT}:{sOUT+3}], 0 offen offset:64
    s_mov_b32 exec_hi, -1
    """)

def gen_kernel(a):
    a("s_cmp_ge_u32 s2, 256\ns_cbranch_scc1 K_END")
    a(f"s_load_dwordx16 s[64:79], s[0:1], 0\ns_load_dwordx4 s[80:83], s[0:1], 64")
    if G.stamps:
        a("s_memrealtime s[50:51]\ns_memtime s[48:49]\ns_waitcnt lgkmcnt(0)\nv_writelane_b32 v254, s50, 0\nv_writelane_b32 v254, s48, 1")
    if G.dbgtime: a("s_memrealtime s[46:47]\ns_memtime s[52:53]")
    a(f"""
    v_and_b32 {vr(vLANE)}, 63, v0
    v_lshrrev_b32 v2, 6, v0
    s_and_b32 s{sXCD}, s2, 7
    v_readfirstlane_b32 s{sWAVE}, v2
    s_lshr_b32 s{sIDX}, s2, 3
    """)
    if G.prefetch:
        a("s_getpc_b64 s[60:61]")
        a.label("PF_BASE")
        a("v_lshlrev_b32 v3, 6, v0")
        for j in range(3):
            a(f"""
            v_cmp_gt_u32 vcc, K_CODE_END-PF_BASE, v3
            s_and_saveexec_b64 s[62:63], vcc
            s_cbranch_execz PF_skip{j}
            global_load_dword v255, v3, s[60:61]
            """)
            a.label(f"PF_skip{j}")
            a("s_mov_b64 exec, s[62:63]")
            if j < 2: a("v_add_u32 v3, 16384, v3")
    L = "NONCE_skip"
    a(f"""
    s_or_b32 s60, s2, s{sWAVE}
    s_cmp_lg_u32 s60, 0
    s_cbranch_scc1 {L}
    s_memrealtime s[60:61]
    s_waitcnt lgkmcnt(0)
    s_or_b32 s60, s60, 1
    v_mov_b32 v2, 0
    v_mov_b32 v3, s60
    s_mov_b64 exec, 1
    global_store_dword v2, v3, s[{pDBG}:{pDBG+1}] sc1
    s_mov_b64 exec, -1
    """)
    a.label(L)
    gen_p1(a)
    gen_p2(a)
    gen_p3(a)
    if G.stamps:
        a("s_waitcnt vmcnt(0)")
        stamp(a, "end")
        a(f"s_cmp_lg_u32 s{sWAVE}, 0\ns_cbranch_scc1 K_END")
        a(f"s_lshl_b32 s62, s2, 8\ns_add_u32 s62, s62, {OFF_ST}")
        a(f"s_add_u32 s4, s{pWS}, s62\ns_addc_u32 s5, s{pWS+1}, 0")
        a("v_lshlrev_b32 v2, 2, v1\nglobal_store_dword v2, v254, s[4:5]")
    if G.dbgtime:
        a("s_waitcnt vmcnt(0)")
        a("s_memrealtime s[48:49]\ns_memtime s[54:55]\ns_waitcnt lgkmcnt(0)")
        a(f"s_cmp_lg_u32 s{sWAVE}, 0\ns_cbranch_scc1 K_END")
        a("""
        s_not_b32 s46, s46
        s_sub_u32 s54, s54, s52
        v_mov_b32 v2, 0
        v_mov_b32 v3, s48
        v_mov_b32 v4, s46
        v_mov_b32 v5, s54
        s_mov_b64 exec, 1
        """)
        a(f"global_atomic_umax v2, v3, s[{pDBG}:{pDBG+1}] offset:4")
        a(f"global_atomic_umax v2, v4, s[{pDBG}:{pDBG+1}] offset:8")
        a(f"global_atomic_umax v2, v5, s[{pDBG}:{pDBG+1}] offset:12")
    a.label("K_END")
    a("s_endpgm")
    a.label("K_CODE_END")

def build(path):
    hdr = open("cdna_kernels/" + NAME + ".s.ref").read().split("\n")
    comments = [l for l in hdr if l.startswith(";") and "@launch" not in l and "Override launch" not in l and "grid=ceil" not in l]
    out = "\n".join(comments) + "\n"
    out += "; @launch grid=(256,1,1) block=(256,1,1) lds=163840\n"
    out += '.amdgcn_target "amdgcn-amd-amdhsa--gfx950"\n.text\n'
    a = Asm(); gen_kernel(a)
    out += kernel_header(KNAME) + a.text()
    out += '.section .rodata,"a"\n' + kernel_desc(KNAME, 512, 102, 256)
    open(path, "w").write(out)

if __name__ == "__main__":
    G.stamps = "--stamps" in sys.argv
    G.prefetch = "--nopf" not in sys.argv
    G.dbgtime = "--dbgtime" in sys.argv
    build(sys.argv[1])
    if G.stamps: open(sys.argv[1] + ".names", "w").write("\n".join(STAMP_NAMES))
```

```python
from asmlib import *
import sys, struct

NAME = "gated_mix__sliding_block__sliding_local_dilated__prompt"
KNAME = NAME + "_kernel"
S, D, H, DH = 2048, 448, 16, 28
WROW, XROW = 2688, 896
SLOT = S * 64
OFF_QKV = 0
OFF_O = 48 * SLOT
OFF_F = OFF_O + 32 * SLOT
F1, F2A, F2B = 0, 2048, 4096
OFF_ST = OFF_F + 8192
WS_USED = OFF_ST + 256 * 256
PS = 7184
BS = 3 * PS
NEG_INF = 0xff800000
SCALE_LOG2E = (DH ** -0.5) * 1.4426950408889634
KB, VB, WOB = 0, 24576, 49152

def f2u(f): return struct.unpack("<I", struct.pack("<f", f))[0]

class G:
    stamps = False
    prefetch = True
    spin_max = 1 << 22
    dbgtime = False
    spinto = 0

sNONCE = 3
pX, pWA, pWOA, pWB, pWOB, pGW, pOUT, pDBG, pWS = 64, 66, 68, 72, 74, 76, 78, 80, 82
sWAVE, sXCD, sIDX = 56, 57, 58
sST = 84
vLANE = 1

def sigma_code(a, vdst, vR, vtmp):
    a(f"""
    v_and_b32 {vr(vdst)}, 1, {vr(vR)}
    v_lshlrev_b32 {vr(vdst)}, 1, {vr(vdst)}
    v_lshrrev_b32 {vr(vtmp)}, 1, {vr(vR)}
    v_mul_u32_u24 {vr(vtmp)}, 3, {vr(vtmp)}
    v_xor_b32 {vr(vdst)}, {vr(vdst)}, {vr(vtmp)}
    """)

def make_srd(a, s, base_pair, size, off=None):
    if off is None:
        a(f"s_mov_b32 s{s}, s{base_pair}\ns_mov_b32 s{s+1}, s{base_pair+1}")
    else:
        a(f"s_add_u32 s{s}, s{base_pair}, {off}\ns_addc_u32 s{s+1}, s{base_pair+1}, 0")
    a(f"s_mov_b32 s{s+2}, {size}\ns_mov_b32 s{s+3}, 0x20000")

STAMP_NAMES = []
def stamp(a, name):
    if G.stamps:
        if name not in STAMP_NAMES: STAMP_NAMES.append(name)
        k = STAMP_NAMES.index(name) + 2
        a(f"s_memtime s[48:49]\ns_waitcnt lgkmcnt(0)\nv_writelane_b32 v254, s48, {k}")

def get_nonce(a, vtmp, first_loaded):
    L = a.newlabel("nonce"); Ld = L + "_done"
    if first_loaded:
        a(f"v_readfirstlane_b32 s{sNONCE}, {vr(vtmp)}")
        a(f"s_cmp_lg_u32 s{sNONCE}, 0\ns_cbranch_scc1 {Ld}")
    a(f"s_mov_b32 s62, 0")
    a.label(L)
    a(f"""
    v_mov_b32 {vr(vtmp)}, 0
    global_load_dword {vr(vtmp)}, {vr(vtmp)}, s[{pDBG}:{pDBG+1}] sc1
    s_waitcnt vmcnt(0)
    v_readfirstlane_b32 s{sNONCE}, {vr(vtmp)}
    s_add_u32 s62, s62, 1
    s_cmp_gt_u32 s62, {G.spin_max}
    s_cbranch_scc1 {Ld}
    s_cmp_eq_u32 s{sNONCE}, 0
    s_cbranch_scc1 {L}
    """)
    a.label(Ld)

def publish_flag(a, sOff, vt0, vt1):
    L = a.newlabel("pub")
    a(f"""
    s_waitcnt vmcnt(0)
    s_barrier
    s_cmp_lg_u32 s{sWAVE}, 0
    s_cbranch_scc1 {L}
    s_add_u32 s60, s{pWS}, {OFF_F}
    s_addc_u32 s61, s{pWS+1}, 0
    v_mov_b32 {vr(vt0)}, s{sOff}
    v_mov_b32 {vr(vt1)}, s{sNONCE}
    s_mov_b64 exec, 1
    global_store_dword {vr(vt0)}, {vr(vt1)}, s[60:61] sc1
    s_mov_b64 exec, -1
    """)
    a.label(L)

def poll_flags(a, vOff, nlanes, vt):
    L = a.newlabel("poll"); Ld = L + "_done"; Ls = L + "_skip"
    hi = (1 << nlanes) - 1
    a(f"""
    s_cmp_lg_u32 s{sWAVE}, 0
    s_cbranch_scc1 {Ls}
    s_add_u32 s60, s{pWS}, {OFF_F}
    s_addc_u32 s61, s{pWS+1}, 0
    s_mov_b32 exec_lo, {hi & 0xffffffff:#x}
    s_mov_b32 exec_hi, {hi >> 32:#x}
    s_mov_b32 s62, 0
    """)
    a.label(L)
    a(f"""
    global_load_dword {vr(vt)}, {vr(vOff)}, s[60:61] sc1
    s_add_u32 s62, s62, 1
    s_waitcnt vmcnt(0)
    v_cmp_ne_u32 vcc, s{sNONCE}, {vr(vt)}
    s_cmp_gt_u32 s62, {G.spin_max}
    s_cbranch_scc1 {Ld}
    s_cbranch_vccnz {L}
    """)
    a.label(Ld)
    a("s_mov_b64 exec, -1")
    a.label(Ls)
    a("s_barrier")

def wo_dma(a, vW, vT0, vT1, vT2, sCB3, sT0, sT1, sM, sWOA, sWOB):
    a(f"""
    v_mul_u32_u24 {vr(vT0)}, 37, {vr(vLANE)}
    v_lshrrev_b32 {vr(vT0)}, 8, {vr(vT0)}
    v_mul_u32_u24 {vr(vT1)}, 7, {vr(vT0)}
    v_sub_u32 {vr(vT1)}, {vr(vLANE)}, {vr(vT1)}
    v_and_b32 {vr(vT2)}, 1, {vr(vT0)}
    v_lshlrev_b32 {vr(vT2)}, 4, {vr(vT2)}
    v_lshrrev_b32 {vr(vT0)}, 1, {vr(vT0)}
    v_add_u32 {vr(vT2)}, {vr(vT2)}, {vr(vT0)}
    v_mul_u32_u24 {vr(vT2)}, 896, {vr(vT2)}
    v_lshlrev_b32 {vr(vT1)}, 4, {vr(vT1)}
    v_add_u32 {vr(vW)}, {vr(vT2)}, {vr(vT1)}
    s_and_b32 s{sT0}, s{sWAVE}, 1
    s_lshl_b32 s{sT0}, s{sT0}, 3
    s_lshr_b32 s{sT1}, s{sWAVE}, 1
    s_lshl_b32 s{sT1}, s{sT1}, 2
    s_add_u32 s{sT0}, s{sT0}, s{sT1}
    s_mul_i32 s{sT0}, s{sT0}, 896
    s_and_b32 s{sT1}, s{sIDX}, 7
    s_mul_i32 s{sT1}, s{sT1}, 112
    s_add_u32 s{sT0}, s{sT0}, s{sT1}
    v_add_u32 {vr(vW)}, s{sT0}, {vr(vW)}
    s_mul_i32 s{sM}, s{sWAVE}, 896
    """)
    make_srd(a, sWOA, pWOA, D * 896)
    make_srd(a, sWOB, pWOB, D * 896)
    a("s_mov_b32 exec_hi, 0x00ffffff")
    for h in range(16):
        for br in (1, 0):
            srd = sWOB if br == 1 else sWOA
            a(f"s_add_u32 s{sT0}, s{sM}, {WOB + (br*16+h)*3584}\ns_mov_b32 m0, s{sT0}\ns_nop 0")
            a(f"buffer_load_dwordx4 {vr(vW)}, s[{srd}:{srd+3}], 0 offen lds")
        if h < 15: a(f"v_add_u32 {vr(vW)}, {28*896}, {vr(vW)}")
    a("s_mov_b32 exec_hi, -1")

def gen_p1(a):
    sX, sW, sWS = 4, 8, 12
    sRB, sCB, sBR = 17, 18, 19
    sBP, sWOFF, sPSTR, sT0, sT1, sT2, sXOFF, sM0 = 20, 21, 22, 23, 24, 25, 26, 27
    sLDSW = 28
    vWOFF, vX0, vX1, vXH = 2, 3, 4, 5
    vTR, vTR3 = 6, 7
    vT0, vT1, vT2, vT3 = 8, 9, 10, 11
    vEP = 12
    vPAD = 23
    vWF = 24
    NRING = 6
    vACC = 48
    vACCH = 136
    vMISC = 168
    vNON = 230
    aX = 0
    aXH = 112

    a(f"""
    s_lshr_b32 s{sBR}, s{sIDX}, 4
    s_lshr_b32 s{sRB}, s{sXCD}, 1
    s_lshl_b32 s{sRB}, s{sRB}, 2
    s_lshr_b32 s{sT2}, s{sIDX}, 2
    s_and_b32 s{sT2}, s{sT2}, 3
    s_add_u32 s{sRB}, s{sRB}, s{sT2}
    s_and_b32 s{sCB}, s{sXCD}, 1
    s_lshl_b32 s{sCB}, s{sCB}, 2
    s_and_b32 s{sT2}, s{sIDX}, 3
    s_add_u32 s{sCB}, s{sCB}, s{sT2}
    s_and_b32 s{sBP}, s{sIDX}, 15
    s_cmp_ge_u32 s{sBP}, 7
    s_cselect_b32 s{sT2}, 7, 0
    s_sub_u32 s{sBP}, s{sBP}, s{sT2}
    s_cmp_ge_u32 s{sBP}, 7
    s_cselect_b32 s{sT2}, 7, 0
    s_sub_u32 s{sBP}, s{sBP}, s{sT2}
    """)
    a(f"""
    v_mul_u32_u24 {vr(vT0)}, 37, {vr(vLANE)}
    v_lshrrev_b32 {vr(vT0)}, 8, {vr(vT0)}
    v_mul_u32_u24 {vr(vT1)}, 7, {vr(vT0)}
    v_sub_u32 {vr(vT1)}, {vr(vLANE)}, {vr(vT1)}
    v_and_b32 {vr(vT2)}, 1, {vr(vT0)}
    v_lshlrev_b32 {vr(vT2)}, 4, {vr(vT2)}
    v_lshrrev_b32 {vr(vT0)}, 1, {vr(vT0)}
    v_add_u32 {vr(vT2)}, {vr(vT2)}, {vr(vT0)}
    v_mul_u32_u24 {vr(vT2)}, {WROW}, {vr(vT2)}
    v_lshlrev_b32 {vr(vT1)}, 4, {vr(vT1)}
    v_add_u32 {vr(vWOFF)}, {vr(vT2)}, {vr(vT1)}
    """)
    a(f"""
    s_lshl_b32 s{sT0}, s{sRB}, 7
    s_lshl_b32 s{sT1}, s{sWAVE}, 5
    s_add_u32 s{sT0}, s{sT0}, s{sT1}
    v_and_b32 {vr(vT0)}, 15, {vr(vLANE)}
    v_lshrrev_b32 {vr(vT1)}, 4, {vr(vLANE)}
    v_lshlrev_b32 {vr(vT1)}, 4, {vr(vT1)}
    v_add_u32 {vr(vT2)}, s{sT0}, {vr(vT0)}
    v_mul_u32_u24 {vr(vT2)}, {XROW}, {vr(vT2)}
    v_add_u32 {vr(vX0)}, {vr(vT2)}, {vr(vT1)}
    v_add_u32 {vr(vX1)}, {16*XROW}, {vr(vX0)}
    s_lshl_b32 s{sT0}, s{sRB}, 7
    s_sub_u32 s{sT0}, s{sT0}, 16
    v_add_u32 {vr(vT2)}, s{sT0}, {vr(vT0)}
    v_mul_i32_i24 {vr(vT2)}, {XROW}, {vr(vT2)}
    v_add_u32 {vr(vXH)}, {vr(vT2)}, {vr(vT1)}
    """)
    a("s_waitcnt lgkmcnt(0)")
    stamp(a, "karg")
    make_srd(a, sX, pX, S * XROW)
    a(f"""
    s_cmp_eq_u32 s{sBR}, 0
    s_cselect_b32 s{sW}, s{pWA}, s{pWB}
    s_cselect_b32 s{sW+1}, s{pWA+1}, s{pWB+1}
    s_mov_b32 s{sW+2}, {D*WROW}
    s_mov_b32 s{sW+3}, 0x20000
    s_mov_b32 s{sT1}, 896
    s_cselect_b32 s{sPSTR}, 112, s{sT1}
    s_mov_b32 s{sT1}, 112
    s_cselect_b32 s{sT0}, 336, s{sT1}
    s_mul_i32 s{sWOFF}, s{sCB}, s{sT0}
    """)
    a(f"""
    s_lshr_b32 s{sT0}, s{sWAVE}, 1
    s_lshl_b32 s{sT0}, s{sT0}, 5
    s_and_b32 s{sT1}, s{sWAVE}, 1
    s_lshl_b32 s{sT1}, s{sT1}, 2
    s_add_u32 s{sT0}, s{sT0}, s{sT1}
    s_mul_i32 s{sT0}, s{sT0}, {WROW}
    s_add_u32 s{sWOFF}, s{sWOFF}, s{sT0}
    s_mul_i32 s{sLDSW}, s{sWAVE}, {2*896}
    """)

    def issue_block(b, halo):
        a(f"""
        s_mul_i32 s{sT0}, s{sBP}, {64*WROW}
        s_add_u32 s{sT0}, s{sT0}, s{sWOFF}
        s_lshl_b32 s{sXOFF}, s{sBP}, 7
        s_mov_b32 exec_hi, 0x00ffffff
        """)
        for p in range(3):
            for e in range(2):
                a(f"s_add_u32 s{sM0}, s{sLDSW}, {b*BS + p*PS + e*896}")
                a(f"s_mov_b32 m0, s{sM0}")
                if e == 0: a(f"s_mov_b32 s{sT1}, s{sT0}")
                else: a(f"s_add_u32 s{sT1}, s{sT0}, {8*WROW}")
                a(f"buffer_load_dwordx4 {vr(vWOFF)}, s[{sW}:{sW+3}], s{sT1} offen lds")
            if p < 2: a(f"s_add_u32 s{sT0}, s{sT0}, s{sPSTR}")
        a("s_mov_b32 exec_hi, -1")
        for ks in range(2):
            for rt in range(2):
                reg = aX + ((b * 2 + ks) * 2 + rt) * 4
                a(f"buffer_load_dwordx4 {ar(reg,4)}, {vr(vX0 if rt == 0 else vX1)}, s[{sX}:{sX+3}], s{sXOFF} offen offset:{64*ks}")
            if halo:
                reg = aXH + (b * 2 + ks) * 4
                a(f"buffer_load_dwordx4 {ar(reg,4)}, {vr(vXH)}, s[{sX}:{sX+3}], s{sXOFF} offen offset:{64*ks}")
        a(f"""
        s_add_u32 s{sBP}, s{sBP}, 1
        s_cmp_eq_u32 s{sBP}, 7
        s_cselect_b32 s{sBP}, 0, s{sBP}
        """)

    def setup_lane_consts(isB):
        a(f"""
        v_lshrrev_b32 {vr(vT0)}, 4, {vr(vLANE)}
        v_and_b32 {vr(vT1)}, 1, {vr(vT0)}
        v_lshlrev_b32 {vr(vT1)}, 3, {vr(vT1)}
        v_lshrrev_b32 {vr(vT2)}, 1, {vr(vT0)}
        v_add_u32 {vr(vT1)}, {vr(vT1)}, {vr(vT2)}
        v_bfe_u32 {vr(vT2)}, {vr(vLANE)}, 2, 2
        v_lshlrev_b32 {vr(vT2)}, 1, {vr(vT2)}
        v_add_u32 {vr(vT1)}, {vr(vT1)}, {vr(vT2)}
        v_mul_u32_u24 {vr(vT1)}, 112, {vr(vT1)}
        v_and_b32 {vr(vT2)}, 3, {vr(vLANE)}
        v_lshlrev_b32 {vr(vT3)}, 3, {vr(vT2)}
        v_add_u32 {vr(vTR)}, {vr(vT1)}, {vr(vT3)}
        v_add_u32 {vr(vTR3)}, {96}, {vr(vTR)}
        v_add_u32 {vr(vT3)}, {PS-16}, {vr(vTR)}
        v_cmp_lt_u32 vcc, 1, {vr(vT2)}
        s_nop 1
        v_cndmask_b32 {vr(vTR3)}, {vr(vTR3)}, {vr(vT3)}, vcc
        """)
        slotsz = (144 if isB else 128) * 64
        a(f"""
        v_and_b32 {vr(vT0)}, 15, {vr(vLANE)}
        s_lshl_b32 s{sT0}, s{sWAVE}, 5
        v_add_u32 {vr(vT1)}, s{sT0}, {vr(vT0)}
        v_lshlrev_b32 {vr(vPAD)}, 6, {vr(vT1)}
        v_lshrrev_b32 {vr(vT0)}, 2, {vr(vT0)}
        """)
        sigma_code(a, vT1, vT0, vT2)
        a(f"v_lshrrev_b32 {vr(vT0)}, 4, {vr(vLANE)}")
        for t in range(11):
            e = vEP + t
            a(f"""
            v_add_u32 {vr(vT2)}, {4*t}, {vr(vT0)}
            v_mul_u32_u24 {vr(vT3)}, 37, {vr(vT2)}
            v_lshrrev_b32 {vr(vT3)}, 8, {vr(vT3)}
            v_mul_u32_u24 {vr(e)}, 7, {vr(vT3)}
            v_sub_u32 {vr(vT2)}, {vr(vT2)}, {vr(e)}
            v_mul_u32_u24 {vr(vT3)}, {slotsz}, {vr(vT3)}
            v_add_u32 {vr(vT3)}, {vr(vT3)}, {vr(vPAD)}
            v_lshrrev_b32 {vr(e)}, 1, {vr(vT2)}
            v_xor_b32 {vr(e)}, {vr(e)}, {vr(vT1)}
            v_lshlrev_b32 {vr(e)}, 4, {vr(e)}
            v_add_u32 {vr(e)}, {vr(e)}, {vr(vT3)}
            v_and_b32 {vr(vT2)}, 1, {vr(vT2)}
            v_lshlrev_b32 {vr(vT2)}, 3, {vr(vT2)}
            v_add_u32 {vr(e)}, {vr(e)}, {vr(vT2)}
            """)

    def main_loop(halo):
        n = 12 if halo else 10
        waits = [4 * n, 4 * n, 4 * n + 1, 3 * n + 1, 2 * n + 1, n + 1, 0]
        steps = [(b, ks, t) for b in range(7) for ks in range(2) for t in range(11)]
        PF = NRING - 1
        def tileoff(t):
            if t == 3: return 0
            p = (4 * t) // 14
            return p * PS + (4 * t - 14 * p) * 8
        def emit_read(i):
            b, ks, t = steps[i]
            if ks == 0 and t == 0:
                a(f"s_waitcnt vmcnt({waits[b]})")
                a("s_barrier")
                stamp(a, f"blk{b}")
                if b == 0: issue_block(5, halo)
                if b == 1:
                    issue_block(6, halo)
                    a(f"v_mov_b32 {vr(vNON)}, 0")
                    a(f"global_load_dword {vr(vNON)}, {vr(vNON)}, s[{pDBG}:{pDBG+1}] sc1")
                if b > 0:
                    a(f"v_add_u32 {vr(vTR)}, {BS}, {vr(vTR)}")
                    a(f"v_add_u32 {vr(vTR3)}, {BS}, {vr(vTR3)}")
            va = vTR3 if t == 3 else vTR
            off = ks * 3584 + tileoff(t)
            w = vWF + (i % NRING) * 4
            a(f"ds_read_b64_tr_b16 {vr(w,2)}, {vr(va)} offset:{off}")
            a(f"ds_read_b64_tr_b16 {vr(w+2,2)}, {vr(va)} offset:{off+1792}")
        for i in range(min(PF, len(steps))): emit_read(i)
        for i, (b, ks, t) in enumerate(steps):
            if i + PF < len(steps):
                emit_read(i + PF); out = PF
            else:
                out = len(steps) - 1 - i
            a(f"s_waitcnt lgkmcnt({min(2*out,15)})")
            w = vWF + (i % NRING) * 4
            first = (b == 0 and ks == 0)
            for rt in range(2):
                acc = vACC + (rt * 11 + t) * 4
                xr = aX + ((b * 2 + ks) * 2 + rt) * 4
                c = "0" if first else vr(acc, 4)
                a(f"v_mfma_f32_16x16x32_bf16 {vr(acc,4)}, {vr(w,4)}, {ar(xr,4)}, {c}")
            if halo and t >= 3:
                acc = vACCH + (t - 3) * 4
                xr = aXH + (b * 2 + ks) * 4
                c = "0" if first else vr(acc, 4)
                a(f"v_mfma_f32_16x16x32_bf16 {vr(acc,4)}, {vr(w,4)}, {ar(xr,4)}, {c}")

    def stage_to_lds(isB):
        a("s_nop 7\ns_barrier")
        rowshift = 1024 if isB else 0
        for rt in range(2):
            for t in range(11):
                acc = vACC + (rt * 11 + t) * 4
                a(f"v_cvt_pk_bf16_f32 {vr(acc)}, {vr(acc)}, {vr(acc+1)}")
                a(f"v_cvt_pk_bf16_f32 {vr(acc+1)}, {vr(acc+2)}, {vr(acc+3)}")
                a(f"ds_write_b64 {vr(vEP+t)}, {vr(acc,2)} offset:{rowshift + rt*1024}")
        if isB:
            skip = a.newlabel("P1_nohalo")
            a(f"s_cmp_lg_u32 s{sWAVE}, 0\ns_cbranch_scc1 {skip}")
            for t in range(3, 11):
                acc = vACCH + (t - 3) * 4
                a(f"v_cvt_pk_bf16_f32 {vr(acc)}, {vr(acc)}, {vr(acc+1)}")
                a(f"v_cvt_pk_bf16_f32 {vr(acc+1)}, {vr(acc+2)}, {vr(acc+3)}")
                a(f"ds_write_b64 {vr(vEP+t)}, {vr(acc,2)} offset:0")
            a(f"""
            v_and_b32 {vr(vT0)}, 15, {vr(vLANE)}
            v_lshrrev_b32 {vr(vT1)}, 2, {vr(vT0)}
            """)
            sigma_code(a, vT2, vT1, vT3)
            a(f"""
            v_xor_b32 {vr(vT2)}, 3, {vr(vT2)}
            v_lshlrev_b32 {vr(vT2)}, 4, {vr(vT2)}
            v_lshlrev_b32 {vr(vT0)}, 6, {vr(vT0)}
            v_add_u32 {vr(vT2)}, {vr(vT2)}, {vr(vT0)}
            v_lshrrev_b32 {vr(vT1)}, 4, {vr(vLANE)}
            v_add_u32 {vr(vT1)}, 2, {vr(vT1)}
            v_mul_u32_u24 {vr(vT3)}, {144*64}, {vr(vT1)}
            v_add_u32 {vr(vT2)}, {vr(vT2)}, {vr(vT3)}
            v_add_u32 {vr(vT2)}, 8, {vr(vT2)}
            v_mov_b32 {vr(vT0)}, 0x3f80
            v_cmp_lt_u32 vcc, 3, {vr(vT1)}
            s_nop 1
            v_cndmask_b32 {vr(vMISC)}, 0, {vr(vT0)}, vcc
            v_mov_b32 {vr(vMISC+1)}, 0
            ds_write_b64 {vr(vT2)}, {vr(vMISC,2)}
            """)
            a.label(skip)
        slotsz = (144 if isB else 128) * 64
        a(f"""
        v_and_b32 {vr(vT0)}, 31, {vr(vLANE)}
        v_bfe_u32 {vr(vT1)}, {vr(vLANE)}, 2, 2
        """)
        sigma_code(a, vT2, vT1, vT3)
        a(f"""
        v_xor_b32 {vr(vT2)}, 3, {vr(vT2)}
        v_lshlrev_b32 {vr(vT2)}, 4, {vr(vT2)}
        s_lshl_b32 s{sT0}, s{sWAVE}, 5
        v_add_u32 {vr(vT0)}, s{sT0}, {vr(vT0)}
        v_lshlrev_b32 {vr(vT0)}, 6, {vr(vT0)}
        v_add_u32 {vr(vT2)}, {vr(vT2)}, {vr(vT0)}
        v_lshrrev_b32 {vr(vT1)}, 5, {vr(vLANE)}
        v_mul_u32_u24 {vr(vT3)}, {slotsz}, {vr(vT1)}
        v_add_u32 {vr(vT2)}, {vr(vT2)}, {vr(vT3)}
        v_add_u32 {vr(vT2)}, {8 + rowshift}, {vr(vT2)}
        v_mov_b32 {vr(vMISC+1)}, 0
        """)
        for i in range(3):
            if isB:
                val = 0 if i == 1 else 0x3f80
                a(f"v_mov_b32 {vr(vMISC)}, {val}")
            else:
                a(f"""
                s_mul_i32 s{sT0}, s{sCB}, 6
                s_add_u32 s{sT0}, s{sT0}, {2*i}
                v_add_u32 {vr(vT0)}, s{sT0}, {vr(vT1)}
                v_lshrrev_b32 {vr(vT0)}, 4, {vr(vT0)}
                v_mov_b32 {vr(vT3)}, 0x3f80
                v_cmp_ne_u32 vcc, 1, {vr(vT0)}
                s_nop 1
                v_cndmask_b32 {vr(vMISC)}, 0, {vr(vT3)}, vcc
                """)
            a(f"ds_write_b64 {vr(vT2)}, {vr(vMISC,2)} offset:{2*i*slotsz}")
        a("s_waitcnt lgkmcnt(0)\ns_barrier")
        stamp(a, "staged")

    LB, LP2 = "P1_B", "P2_START"
    make_srd(a, sWS, pWS, WS_USED)
    a(f"s_cmp_eq_u32 s{sBR}, 1\ns_cbranch_scc1 {LB}")
    for b in range(5): issue_block(b, False)
    stamp(a, "iss5")
    setup_lane_consts(False)
    stamp(a, "issued")
    main_loop(False)
    stamp(a, "gemm")
    stage_to_lds(False)
    a(f"""
    v_lshlrev_b32 {vr(vT0)}, 4, {vr(vLANE)}
    s_lshl_b32 s{sT0}, s{sWAVE}, 10
    v_add_u32 {vr(vT0)}, s{sT0}, {vr(vT0)}
    s_mul_i32 s{sT1}, s{sCB}, {6*SLOT}
    s_lshl_b32 s{sT2}, s{sRB}, 13
    s_add_u32 s{sT1}, s{sT1}, s{sT2}
    """)
    for i in range(12):
        r = vACC + i * 4
        a(f"ds_read_b128 {vr(r,4)}, {vr(vT0)} offset:{i*4096}")
    for i in range(12):
        r = vACC + i * 4
        a(f"s_waitcnt lgkmcnt({11-i})")
        a(f"s_add_u32 s{sT2}, s{sT1}, {OFF_QKV + (i>>1)*SLOT + (i&1)*4096}")
        a(f"buffer_store_dwordx4 {vr(r,4)}, {vr(vT0)}, s[{sWS}:{sWS+3}], s{sT2} offen sc1")
    get_nonce(a, vNON, True)
    a(f"s_lshl_b32 s{sT0}, s{sRB}, 7\ns_lshl_b32 s{sT1}, s{sCB}, 2\ns_add_u32 s{sT0}, s{sT0}, s{sT1}\ns_add_u32 s{sT0}, s{sT0}, {F1}")
    publish_flag(a, sT0, vT0, vT1)
    stamp(a, "pub1")
    a(f"s_mov_b32 s59, 1")
    a(f"s_cmp_eq_u32 s{sWAVE}, 0\ns_cbranch_scc1 {LP2}")
    wo_dma(a, vT3, vT0, vT1, vT2, None, sT0, sT1, sT2, 40, 44)
    a(f"s_mov_b32 s59, 0")
    a(f"s_branch {LP2}")

    a.label(LB)
    for b in range(5): issue_block(b, True)
    stamp(a, "iss5")
    setup_lane_consts(True)
    stamp(a, "issued")
    main_loop(True)
    stamp(a, "gemm")
    stage_to_lds(True)
    get_nonce(a, vNON, True)
    SL = 144 * 64
    vQA, vVA0, vVA1, vOA = 168, 169, 170, 171
    vMa, vMb, vMa0 = 172, 176, 180
    vQ, vKa, vKb = 184, 188, 192
    vSa, vSb = 196, 200
    vV0, vV1 = 204, 208
    vO0, vO1 = 212, 216
    vM, vU0, vU1, vRI = 220, 221, 222, 223
    a(f"""
    v_and_b32 {vr(vT0)}, 15, {vr(vLANE)}
    v_lshrrev_b32 {vr(vT1)}, 2, {vr(vT0)}
    """)
    sigma_code(a, vT2, vT1, vT3)
    a(f"""
    v_lshrrev_b32 {vr(vT1)}, 4, {vr(vLANE)}
    v_xor_b32 {vr(vT2)}, {vr(vT2)}, {vr(vT1)}
    v_lshlrev_b32 {vr(vT2)}, 4, {vr(vT2)}
    s_lshl_b32 s{sT0}, s{sWAVE}, 5
    v_add_u32 {vr(vT3)}, s{sT0}, {vr(vT0)}
    v_lshlrev_b32 {vr(vT3)}, 6, {vr(vT3)}
    v_add_u32 {vr(vQA)}, {vr(vT2)}, {vr(vT3)}
    """)
    sigma_code(a, vT2, vT1, vT3)
    a(f"""
    v_bfe_u32 {vr(vT3)}, {vr(vLANE)}, 1, 1
    v_xor_b32 {vr(vT2)}, {vr(vT2)}, {vr(vT3)}
    v_lshlrev_b32 {vr(vT2)}, 4, {vr(vT2)}
    v_and_b32 {vr(vT3)}, 1, {vr(vLANE)}
    v_lshlrev_b32 {vr(vT3)}, 3, {vr(vT3)}
    v_add_u32 {vr(vT2)}, {vr(vT2)}, {vr(vT3)}
    v_lshlrev_b32 {vr(vT3)}, 2, {vr(vT1)}
    v_bfe_u32 {vr(vVA0)}, {vr(vLANE)}, 2, 2
    v_add_u32 {vr(vT3)}, {vr(vT3)}, {vr(vVA0)}
    s_lshl_b32 s{sT0}, s{sWAVE}, 5
    v_add_u32 {vr(vT3)}, s{sT0}, {vr(vT3)}
    v_lshlrev_b32 {vr(vT3)}, 6, {vr(vT3)}
    v_add_u32 {vr(vVA0)}, {vr(vT2)}, {vr(vT3)}
    v_xor_b32 {vr(vVA1)}, 32, {vr(vVA0)}
    """)
    a(f"""
    v_and_b32 {vr(vT0)}, 15, {vr(vLANE)}
    v_lshlrev_b32 {vr(vT2)}, 2, {vr(vT1)}
    v_sub_u32 {vr(vT0)}, {vr(vT0)}, {vr(vT2)}
    v_mov_b32 {vr(vT3)}, {NEG_INF}
    """)
    for r in range(4):
        a(f"""
        v_subrev_u32 {vr(vT2)}, {r}, {vr(vT0)}
        v_and_b32 {vr(vU0)}, 0xfffffff1, {vr(vT2)}
        v_cmp_eq_u32 vcc, 0, {vr(vU0)}
        s_nop 1
        v_cndmask_b32 {vr(vMb+r)}, {vr(vT3)}, 0, vcc
        v_add_u32 {vr(vT2)}, 16, {vr(vT2)}
        v_and_b32 {vr(vU0)}, 0xfffffff1, {vr(vT2)}
        v_cmp_eq_u32 vcc, 0, {vr(vU0)}
        s_nop 1
        v_cndmask_b32 {vr(vMa+r)}, {vr(vT3)}, 0, vcc
        v_mov_b32 {vr(vMa0+r)}, {vr(vMa+r)}
        """)
    lab = a.newlabel("P1_m0")
    a(f"s_or_b32 s{sT0}, s{sRB}, s{sWAVE}\ns_cmp_lg_u32 s{sT0}, 0\ns_cbranch_scc1 {lab}")
    for r in range(4): a(f"v_mov_b32 {vr(vMa0+r)}, {vr(vT3)}")
    a.label(lab)
    a(f"""
    v_and_b32 {vr(vT0)}, 15, {vr(vLANE)}
    s_lshl_b32 s{sT0}, s{sRB}, 7
    s_lshl_b32 s{sT1}, s{sWAVE}, 5
    s_add_u32 s{sT0}, s{sT0}, s{sT1}
    v_add_u32 {vr(vT0)}, s{sT0}, {vr(vT0)}
    v_lshlrev_b32 {vr(vT0)}, 6, {vr(vT0)}
    v_and_b32 {vr(vT2)}, 1, {vr(vT1)}
    v_lshlrev_b32 {vr(vT2)}, 5, {vr(vT2)}
    v_lshrrev_b32 {vr(vT3)}, 1, {vr(vT1)}
    v_lshlrev_b32 {vr(vT3)}, 4, {vr(vT3)}
    v_add3_u32 {vr(vOA)}, {vr(vT0)}, {vr(vT2)}, {vr(vT3)}
    s_lshl_b32 s{sT0}, s{sCB}, 1
    s_add_u32 s{sT0}, s{sT0}, 16
    s_mul_i32 s{sT0}, s{sT0}, {SLOT}
    s_add_u32 s{sT0}, s{sT0}, {OFF_O}
    s_mov_b32 s{sT1}, {f2u(SCALE_LOG2E)}
    """)
    for hh in range(2):
        for rt in range(2):
            T = 1 + rt
            a(f"ds_read_b128 {vr(vQ,4)}, {vr(vQA)} offset:{(0+hh)*SL + T*1024}")
            a(f"ds_read_b128 {vr(vKa,4)}, {vr(vQA)} offset:{(2+hh)*SL + (T-1)*1024}")
            a(f"ds_read_b128 {vr(vKb,4)}, {vr(vQA)} offset:{(2+hh)*SL + T*1024}")
            for dt, (va, vv) in enumerate(((vVA0, vV0), (vVA1, vV1))):
                a(f"ds_read_b64_tr_b16 {vr(vv,2)}, {vr(va)} offset:{(4+hh)*SL + (T-1)*1024}")
                a(f"ds_read_b64_tr_b16 {vr(vv+2,2)}, {vr(va)} offset:{(4+hh)*SL + T*1024}")
            a("s_waitcnt lgkmcnt(4)")
            ma = vMa0 if rt == 0 else vMa
            a(f"v_mfma_f32_16x16x32_bf16 {vr(vSa,4)}, {vr(vKa,4)}, {vr(vQ,4)}, {vr(ma,4)}")
            a(f"v_mfma_f32_16x16x32_bf16 {vr(vSb,4)}, {vr(vKb,4)}, {vr(vQ,4)}, {vr(vMb,4)}")
            a("s_nop 7")
            a(f"""
            v_max3_f32 {vr(vM)}, {vr(vSa)}, {vr(vSa+1)}, {vr(vSa+2)}
            v_max3_f32 {vr(vM)}, {vr(vM)}, {vr(vSa+3)}, {vr(vSb)}
            v_max3_f32 {vr(vM)}, {vr(vM)}, {vr(vSb+1)}, {vr(vSb+2)}
            v_max_f32 {vr(vM)}, {vr(vM)}, {vr(vSb+3)}
            v_mov_b32 {vr(vU0)}, {vr(vM)}
            s_nop 1
            v_permlane32_swap_b32 {vr(vM)}, {vr(vU0)}
            s_nop 0
            v_max_f32 {vr(vM)}, {vr(vM)}, {vr(vU0)}
            v_mov_b32 {vr(vU0)}, {vr(vM)}
            s_nop 1
            v_permlane16_swap_b32 {vr(vM)}, {vr(vU0)}
            s_nop 0
            v_max_f32 {vr(vM)}, {vr(vM)}, {vr(vU0)}
            v_mul_f32 {vr(vM)}, s{sT1}, {vr(vM)}
            """)
            for r in range(8): a(f"v_fma_f32 {vr(vSa+r)}, {vr(vSa+r)}, s{sT1}, -{vr(vM)}")
            for r in range(8): a(f"v_exp_f32 {vr(vSa+r)}, {vr(vSa+r)}")
            a("s_nop 0")
            for j in range(4): a(f"v_cvt_pk_bf16_f32 {vr(vSa+j)}, {vr(vSa+2*j)}, {vr(vSa+2*j+1)}")
            a("s_waitcnt lgkmcnt(0)\ns_nop 1")
            a(f"v_mfma_f32_16x16x32_bf16 {vr(vO0,4)}, {vr(vV0,4)}, {vr(vSa,4)}, 0")
            a(f"v_mfma_f32_16x16x32_bf16 {vr(vO1,4)}, {vr(vV1,4)}, {vr(vSa,4)}, 0")
            a("s_nop 7")
            a(f"""
            v_mov_b32 {vr(vU0)}, {vr(vO1)}
            v_mov_b32 {vr(vU1)}, {vr(vO1)}
            s_nop 1
            v_permlane32_swap_b32 {vr(vU0)}, {vr(vU1)}
            v_mov_b32 {vr(vU0)}, {vr(vU1)}
            s_nop 1
            v_permlane16_swap_b32 {vr(vU0)}, {vr(vU1)}
            s_nop 0
            v_rcp_f32 {vr(vRI)}, {vr(vU1)}
            v_cmp_gt_u32 vcc, 48, {vr(vLANE)}
            s_nop 1
            v_cndmask_b32 {vr(vU0)}, 0, {vr(vRI)}, vcc
            """)
            for r in range(4):
                a(f"v_mul_f32 {vr(vO0+r)}, {vr(vO0+r)}, {vr(vRI)}")
                a(f"v_mul_f32 {vr(vO1+r)}, {vr(vO1+r)}, {vr(vU0)}")
            a(f"""
            v_cvt_pk_bf16_f32 {vr(vO0)}, {vr(vO0)}, {vr(vO0+1)}
            v_cvt_pk_bf16_f32 {vr(vO0+1)}, {vr(vO0+2)}, {vr(vO0+3)}
            v_cvt_pk_bf16_f32 {vr(vO0+2)}, {vr(vO1)}, {vr(vO1+1)}
            v_cvt_pk_bf16_f32 {vr(vO0+3)}, {vr(vO1+2)}, {vr(vO1+3)}
            s_nop 1
            v_permlane16_swap_b32 {vr(vO0)}, {vr(vO0+2)}
            v_permlane16_swap_b32 {vr(vO0+1)}, {vr(vO0+3)}
            s_add_u32 s{sT2}, s{sT0}, {hh*SLOT + rt*1024}
            s_nop 0
            buffer_store_dwordx4 {vr(vO0,4)}, {vr(vOA)}, s[{sWS}:{sWS+3}], s{sT2} offen sc1
            s_nop 1
            """)
    a(f"s_lshl_b32 s{sT0}, s{sRB}, 7\ns_lshl_b32 s{sT1}, s{sCB}, 2\ns_add_u32 s{sT0}, s{sT0}, s{sT1}\ns_add_u32 s{sT0}, s{sT0}, {F2B}")
    publish_flag(a, sT0, vT0, vT1)
    stamp(a, "pub1")
    a(f"s_mov_b32 s59, 1")
    a.label(LP2)

def gen_p2(a):
    sQ, sK, sV, sO = 4, 8, 12, 16
    sHD, sI, sT0, sT1, sT2, sC = 21, 22, 23, 24, 25, 26
    vT0, vT1, vT2, vT3 = 2, 3, 4, 5
    vKA0, vKA1, vVA0, vVA1, vDM, vOA = 6, 7, 8, 9, 10, 11
    vQ = 12
    vKF = 20
    vVF = 36
    vO = 52
    vM, vU0, vU1, vMC = 68, 69, 70, 72
    vS = 76
    a(f"""
    s_lshr_b32 s{sHD}, s{sIDX}, 4
    s_lshl_b32 s{sT0}, s{sXCD}, 1
    s_add_u32 s{sHD}, s{sHD}, s{sT0}
    s_and_b32 s{sI}, s{sIDX}, 15
    s_mul_i32 s{sT0}, s{sHD}, {SLOT}
    """)
    for srd, part in ((sQ, 0), (sK, 1), (sV, 2)):
        a(f"s_add_u32 s{sT1}, s{sT0}, {OFF_QKV + part*16*SLOT}")
        a(f"s_add_u32 s{srd}, s{pWS}, s{sT1}\ns_addc_u32 s{srd+1}, s{pWS+1}, 0\ns_mov_b32 s{srd+2}, {SLOT}\ns_mov_b32 s{srd+3}, 0x20000")
    a(f"s_add_u32 s{sT1}, s{sT0}, {OFF_O}")
    a(f"s_add_u32 s{sO}, s{pWS}, s{sT1}\ns_addc_u32 s{sO+1}, s{pWS+1}, 0\ns_mov_b32 s{sO+2}, {SLOT}\ns_mov_b32 s{sO+3}, 0x20000")
    a(f"""
    s_lshl_b32 s{sT0}, s{sI}, 13
    s_sub_u32 s{sT0}, s{sT0}, 16384
    s_lshl_b32 s{sT1}, s{sWAVE}, 10
    s_add_u32 s{sT0}, s{sT0}, s{sT1}
    v_lshlrev_b32 {vr(vDM)}, 4, {vr(vLANE)}
    v_add_u32 {vr(vDM)}, s{sT0}, {vr(vDM)}
    v_and_b32 {vr(vT0)}, 31, {vr(vLANE)}
    v_bfe_u32 {vr(vT1)}, {vr(vLANE)}, 2, 2
    """)
    sigma_code(a, vT2, vT1, vT3)
    a(f"""
    v_lshrrev_b32 {vr(vT1)}, 5, {vr(vLANE)}
    v_xor_b32 {vr(vT2)}, {vr(vT2)}, {vr(vT1)}
    v_lshlrev_b32 {vr(vT2)}, 4, {vr(vT2)}
    s_lshl_b32 s{sT0}, s{sWAVE}, 5
    v_add_u32 {vr(vT3)}, s{sT0}, {vr(vT0)}
    v_lshlrev_b32 {vr(vT3)}, 6, {vr(vT3)}
    v_add_u32 {vr(vKA0)}, {vr(vT2)}, {vr(vT3)}
    v_xor_b32 {vr(vKA1)}, 32, {vr(vKA0)}
    """)
    for idx, (va, radd) in enumerate(((vVA0, 0), (vVA1, 2))):
        a(f"""
        v_lshrrev_b32 {vr(vT0)}, 5, {vr(vLANE)}
        v_add_u32 {vr(vT1)}, {radd}, {vr(vT0)}
        """)
        sigma_code(a, vT2, vT1, vT3)
        a(f"""
        v_bfe_u32 {vr(vT3)}, {vr(vLANE)}, 4, 1
        v_lshlrev_b32 {vr(vT3)}, 1, {vr(vT3)}
        v_xor_b32 {vr(vT2)}, {vr(vT2)}, {vr(vT3)}
        v_bfe_u32 {vr(vT3)}, {vr(vLANE)}, 1, 1
        v_xor_b32 {vr(vT2)}, {vr(vT2)}, {vr(vT3)}
        v_lshlrev_b32 {vr(vT2)}, 4, {vr(vT2)}
        v_and_b32 {vr(vT3)}, 1, {vr(vLANE)}
        v_lshlrev_b32 {vr(vT3)}, 3, {vr(vT3)}
        v_add_u32 {vr(vT2)}, {vr(vT2)}, {vr(vT3)}
        v_lshlrev_b32 {vr(vT1)}, 2, {vr(vT1)}
        v_bfe_u32 {vr(vT3)}, {vr(vLANE)}, 2, 2
        v_add_u32 {vr(vT1)}, {vr(vT1)}, {vr(vT3)}
        s_lshl_b32 s{sT0}, s{sWAVE}, 5
        v_add_u32 {vr(vT1)}, s{sT0}, {vr(vT1)}
        v_lshlrev_b32 {vr(vT1)}, 6, {vr(vT1)}
        v_add_u32 {vr(va)}, {vr(vT2)}, {vr(vT1)}
        v_add_u32 {vr(va)}, {VB}, {vr(va)}
        """)
    a(f"""
    v_and_b32 {vr(vT0)}, 31, {vr(vLANE)}
    v_lshrrev_b32 {vr(vT1)}, 5, {vr(vLANE)}
    v_lshlrev_b32 {vr(vT1)}, 2, {vr(vT1)}
    v_sub_u32 {vr(vT0)}, {vr(vT0)}, {vr(vT1)}
    v_mov_b32 {vr(vT3)}, {NEG_INF}
    """)
    for r in range(16):
        kr = 8 * (r >> 2) + (r & 3)
        a(f"""
        v_cmp_gt_i32 vcc, {kr}, {vr(vT0)}
        s_nop 1
        v_cndmask_b32 {vr(vS+r)}, {vr(vT3)}, 0, vcc
        v_cndmask_b32 {vr(vS+128+r)}, 0, {vr(vT3)}, vcc
        """)
    a(f"s_mov_b32 s{sC}, {f2u(SCALE_LOG2E)}\ns_mov_b32 s{sC+1}, {f2u(SCALE_LOG2E)}")
    a(f"""
    v_lshrrev_b32 {vr(vT0)}, 3, {vr(vLANE)}
    v_add_u32 {vr(vT0)}, s{sI}, {vr(vT0)}
    v_subrev_u32 {vr(vT0)}, 2, {vr(vT0)}
    v_max_i32 {vr(vT0)}, 0, {vr(vT0)}
    v_lshlrev_b32 {vr(vT0)}, 7, {vr(vT0)}
    v_and_b32 {vr(vT1)}, 7, {vr(vLANE)}
    v_lshlrev_b32 {vr(vT1)}, 2, {vr(vT1)}
    v_add3_u32 {vr(vT0)}, {vr(vT0)}, {vr(vT1)}, {F1}
    """)
    poll_flags(a, vT0, 24, vT1)
    stamp(a, "flag1")
    a(f"s_lshl_b32 s{sT1}, s{sWAVE}, 10")
    for j in range(6):
        a(f"s_add_u32 s{sT2}, s{sT1}, {KB + j*4096}\ns_mov_b32 m0, s{sT2}\ns_nop 0")
        a(f"buffer_load_dwordx4 {vr(vDM)}, s[{sK}:{sK+3}], 0 offen sc1 lds")
        a(f"s_add_u32 s{sT2}, s{sT1}, {VB + j*4096}\ns_mov_b32 m0, s{sT2}\ns_nop 0")
        a(f"buffer_load_dwordx4 {vr(vDM)}, s[{sV}:{sV+3}], 0 offen sc1 lds")
        if j < 5: a(f"v_add_u32 {vr(vDM)}, 4096, {vr(vDM)}")
    a(f"""
    s_lshl_b32 s{sT0}, s{sI}, 13
    v_add_u32 {vr(vT0)}, s{sT0}, {vr(vKA0)}
    v_add_u32 {vr(vT1)}, s{sT0}, {vr(vKA1)}
    buffer_load_dwordx4 {vr(vQ,4)}, {vr(vT0)}, s[{sQ}:{sQ+3}], 0 offen sc1
    buffer_load_dwordx4 {vr(vQ+4,4)}, {vr(vT1)}, s[{sQ}:{sQ+3}], 0 offen sc1
    """)
    L1 = a.newlabel("P2_wo"); L2 = L1 + "_j"
    a(f"s_cmp_eq_u32 s59, 0\ns_cbranch_scc1 {L1}")
    wo_dma(a, vT3, vT0, vT1, vT2, None, sT0, sT1, sT2, 40, 44)
    a(f"s_waitcnt vmcnt(32)\ns_branch {L2}")
    a.label(L1)
    a("s_waitcnt vmcnt(0)")
    a.label(L2)
    lab = a.newlabel("P2_nopatch")
    a(f"s_cmp_ge_u32 s{sI}, 2\ns_cbranch_scc1 {lab}")
    a(f"v_lshrrev_b32 {vr(vT0)}, 4, {vr(vLANE)}")
    sigma_code(a, vT1, vT0, vT2)
    a(f"""
    v_xor_b32 {vr(vT1)}, 3, {vr(vT1)}
    v_and_b32 {vr(vT2)}, 3, {vr(vLANE)}
    v_cmp_eq_u32 vcc, {vr(vT1)}, {vr(vT2)}
    v_lshlrev_b32 {vr(vT0)}, 4, {vr(vLANE)}
    s_lshl_b32 s{sT1}, s{sWAVE}, 10
    v_add_u32 {vr(vT0)}, s{sT1}, {vr(vT0)}
    v_mov_b32 {vr(vT2)}, 0xf14a
    s_and_saveexec_b64 s[28:29], vcc
    """)
    for j in range(4):
        if j == 2: a(f"s_cmp_eq_u32 s{sI}, 1\ns_cbranch_scc1 {lab}_r")
        a(f"ds_write_b32 {vr(vT0)}, {vr(vT2)} offset:{KB + j*4096 + 8}")
    a.label(lab + "_r")
    a("s_mov_b64 exec, s[28:29]\ns_waitcnt lgkmcnt(0)")
    a.label(lab)
    a("s_barrier")
    stamp(a, "kv")
    steps = [(kt, ks) for kt in range(9) for ks in range(2)]
    def kread(i):
        kt, ks = steps[i]
        a(f"ds_read_b128 {vr(vKF + (i%4)*4,4)}, {vr(vKA0 if ks == 0 else vKA1)} offset:{KB + kt*2048}")
    for i in range(3): kread(i)
    for i, (kt, ks) in enumerate(steps):
        if i + 3 < len(steps): kread(i + 3)
        a(f"s_waitcnt lgkmcnt({min(3, len(steps)-1-i)})")
        sreg = vS + kt * 16
        c = (vr(sreg, 16) if kt in (0, 8) else "0") if ks == 0 else vr(sreg, 16)
        a(f"v_mfma_f32_32x32x16_bf16 {vr(sreg,16)}, {vr(vKF+(i%4)*4,4)}, {vr(vQ+4*ks,4)}, {c}")
    a("s_nop 15")
    stamp(a, "qk")
    a(f"v_max3_f32 {vr(vM)}, {vr(vS)}, {vr(vS+1)}, {vr(vS+2)}")
    r = 3
    while r + 1 < 144:
        a(f"v_max3_f32 {vr(vM)}, {vr(vM)}, {vr(vS+r)}, {vr(vS+r+1)}")
        r += 2
    a(f"v_max_f32 {vr(vM)}, {vr(vM)}, {vr(vS+143)}")
    a(f"""
    v_mov_b32 {vr(vU0)}, {vr(vM)}
    s_nop 1
    v_permlane32_swap_b32 {vr(vM)}, {vr(vU0)}
    s_nop 0
    v_max_f32 {vr(vM)}, {vr(vM)}, {vr(vU0)}
    v_mul_f32 {vr(vMC)}, s{sC}, {vr(vM)}
    """)
    vsteps = [(kt, u) for kt in range(9) for u in range(2)]
    def vread(i):
        kt, u = vsteps[i]
        w = vVF + (i % 4) * 4
        a(f"ds_read_b64_tr_b16 {vr(w,2)}, {vr(vVA0)} offset:{kt*2048 + u*1024}")
        a(f"ds_read_b64_tr_b16 {vr(w+2,2)}, {vr(vVA1)} offset:{kt*2048 + u*1024}")
    for i in range(3): vread(i)
    for kt in range(9):
        sreg = vS + kt * 16
        for j in range(8):
            a(f"v_pk_fma_f32 {vr(sreg+2*j,2)}, {vr(sreg+2*j,2)}, s[{sC}:{sC+1}], {vr(vMC,2)} op_sel_hi:[1,0,0] neg_lo:[0,0,1] neg_hi:[0,0,1]")
        for r in range(16): a(f"v_exp_f32 {vr(sreg+r)}, {vr(sreg+r)}")
        a("s_nop 0")
        for j in range(8): a(f"v_cvt_pk_bf16_f32 {vr(sreg+j)}, {vr(sreg+2*j)}, {vr(sreg+2*j+1)}")
        for u in range(2):
            i = kt * 2 + u
            if i + 3 < len(vsteps): vread(i + 3)
            a(f"s_waitcnt lgkmcnt({2*min(3, len(vsteps)-1-i)})")
            c = "0" if i == 0 else vr(vO, 16)
            a(f"v_mfma_f32_32x32x16_bf16 {vr(vO,16)}, {vr(vVF+(i%4)*4,4)}, {vr(sreg+4*u,4)}, {c}")
    a("s_nop 15")
    a(f"""
    v_mov_b32 {vr(vU0)}, {vr(vO+12)}
    v_mov_b32 {vr(vU1)}, {vr(vO+12)}
    s_nop 1
    v_permlane32_swap_b32 {vr(vU0)}, {vr(vU1)}
    s_nop 0
    v_rcp_f32 {vr(vU1)}, {vr(vU1)}
    v_cmp_gt_u32 vcc, 32, {vr(vLANE)}
    s_nop 1
    v_cndmask_b32 {vr(vU0)}, 0, {vr(vU1)}, vcc
    """)
    for r in range(16): a(f"v_mul_f32 {vr(vO+r)}, {vr(vO+r)}, {vr(vU1 if r < 12 else vU0)}")
    for j in range(8): a(f"v_cvt_pk_bf16_f32 {vr(vO+j)}, {vr(vO+2*j)}, {vr(vO+2*j+1)}")
    a(f"""
    s_nop 1
    v_permlane32_swap_b32 {vr(vO)}, {vr(vO+2)}
    v_permlane32_swap_b32 {vr(vO+1)}, {vr(vO+3)}
    v_permlane32_swap_b32 {vr(vO+4)}, {vr(vO+6)}
    v_permlane32_swap_b32 {vr(vO+5)}, {vr(vO+7)}
    s_nop 1
    v_permlane16_swap_b32 {vr(vO)}, {vr(vO+4)}
    v_permlane16_swap_b32 {vr(vO+1)}, {vr(vO+5)}
    v_permlane16_swap_b32 {vr(vO+2)}, {vr(vO+6)}
    v_permlane16_swap_b32 {vr(vO+3)}, {vr(vO+7)}
    v_and_b32 {vr(vT0)}, 15, {vr(vLANE)}
    s_lshl_b32 s{sT0}, s{sI}, 7
    s_lshl_b32 s{sT1}, s{sWAVE}, 5
    s_add_u32 s{sT0}, s{sT0}, s{sT1}
    v_add_u32 {vr(vT0)}, s{sT0}, {vr(vT0)}
    v_lshlrev_b32 {vr(vT0)}, 6, {vr(vT0)}
    v_bfe_u32 {vr(vT1)}, {vr(vLANE)}, 4, 1
    v_lshlrev_b32 {vr(vT1)}, 5, {vr(vT1)}
    v_bfe_u32 {vr(vT2)}, {vr(vLANE)}, 5, 1
    v_lshlrev_b32 {vr(vT2)}, 4, {vr(vT2)}
    v_add3_u32 {vr(vOA)}, {vr(vT0)}, {vr(vT1)}, {vr(vT2)}
    buffer_store_dwordx4 {vr(vO,4)}, {vr(vOA)}, s[{sO}:{sO+3}], 0 offen sc1
    buffer_store_dwordx4 {vr(vO+4,4)}, {vr(vOA)}, s[{sO}:{sO+3}], 0 offen offset:1024 sc1
    """)
    stamp(a, "att")
    a(f"s_lshl_b32 s{sT0}, s{sI}, 7\ns_lshl_b32 s{sT1}, s{sHD}, 2\ns_add_u32 s{sT0}, s{sT0}, s{sT1}\ns_add_u32 s{sT0}, s{sT0}, {F2A}")
    publish_flag(a, sT0, vT0, vT1)
    stamp(a, "pub2")

def gen_p3(a):
    sX, sO, sOUT, sG = 4, 16, 20, 24
    sRB, sCB, sT0, sT1, sT2 = 29, 30, 31, 32, 33
    vT0, vT1, vT2, vT3 = 2, 3, 4, 5
    vTRA, vTRB, vOL, vXL, vGL, vOUT = 7, 8, 9, 10, 11, 12
    vWF = 16
    NRING = 6
    vAA, vAB = 40, 56
    vG = 72
    vGW = 76
    aO = 0
    aX = 128
    a(f"""
    s_lshl_b32 s{sRB}, s{sXCD}, 2
    s_lshr_b32 s{sT2}, s{sIDX}, 3
    s_add_u32 s{sRB}, s{sRB}, s{sT2}
    s_and_b32 s{sCB}, s{sIDX}, 7
    """)
    make_srd(a, sX, pX, S * XROW)
    make_srd(a, sG, pGW, 896)
    make_srd(a, sOUT, pOUT, S * 896)
    make_srd(a, sO, pWS, 32 * SLOT, OFF_O)
    a(f"""
    v_and_b32 {vr(vT0)}, 15, {vr(vLANE)}
    s_lshl_b32 s{sT0}, s{sRB}, 6
    s_lshl_b32 s{sT1}, s{sWAVE}, 4
    s_add_u32 s{sT0}, s{sT0}, s{sT1}
    v_add_u32 {vr(vT0)}, s{sT0}, {vr(vT0)}
    v_lshrrev_b32 {vr(vT1)}, 4, {vr(vLANE)}
    v_lshlrev_b32 {vr(vGL)}, 4, {vr(vT1)}
    v_lshlrev_b32 {vr(vT2)}, 6, {vr(vT0)}
    v_add_u32 {vr(vOL)}, {vr(vT2)}, {vr(vGL)}
    v_mul_u32_u24 {vr(vT2)}, 896, {vr(vT0)}
    v_add_u32 {vr(vXL)}, {vr(vT2)}, {vr(vGL)}
    v_and_b32 {vr(vT3)}, 1, {vr(vT1)}
    v_lshlrev_b32 {vr(vT3)}, 5, {vr(vT3)}
    v_lshrrev_b32 {vr(vT1)}, 1, {vr(vT1)}
    v_lshlrev_b32 {vr(vT1)}, 4, {vr(vT1)}
    v_add3_u32 {vr(vOUT)}, {vr(vT2)}, {vr(vT3)}, {vr(vT1)}
    s_mul_i32 s{sT1}, s{sCB}, 112
    v_add_u32 {vr(vOUT)}, s{sT1}, {vr(vOUT)}
    """)
    for ks in range(14):
        a(f"buffer_load_dwordx4 {ar(aX+ks*4,4)}, {vr(vXL)}, s[{sX}:{sX+3}], 0 offen offset:{64*ks}")
        a(f"buffer_load_dwordx4 {vr(vGW+ks*4,4)}, {vr(vGL)}, s[{sG}:{sG+3}], 0 offen offset:{64*ks}")
    a(f"""
    v_lshrrev_b32 {vr(vT0)}, 4, {vr(vLANE)}
    v_and_b32 {vr(vT1)}, 1, {vr(vT0)}
    v_lshlrev_b32 {vr(vT1)}, 3, {vr(vT1)}
    v_lshrrev_b32 {vr(vT2)}, 1, {vr(vT0)}
    v_add_u32 {vr(vT1)}, {vr(vT1)}, {vr(vT2)}
    v_bfe_u32 {vr(vT2)}, {vr(vLANE)}, 2, 2
    v_lshlrev_b32 {vr(vT2)}, 1, {vr(vT2)}
    v_add_u32 {vr(vT1)}, {vr(vT1)}, {vr(vT2)}
    v_mul_u32_u24 {vr(vT1)}, 112, {vr(vT1)}
    v_and_b32 {vr(vT2)}, 3, {vr(vLANE)}
    v_lshlrev_b32 {vr(vT3)}, 3, {vr(vT2)}
    v_add_u32 {vr(vTRA)}, {vr(vT1)}, {vr(vT3)}
    v_add_u32 {vr(vTRA)}, {WOB}, {vr(vTRA)}
    v_add_u32 {vr(vTRB)}, {16*3584}, {vr(vTRA)}
    """)
    a(f"""
    s_lshr_b32 s{sT0}, s{sRB}, 1
    s_lshl_b32 s{sT0}, s{sT0}, 7
    s_add_u32 s{sT1}, s{sT0}, {F2B}
    v_lshlrev_b32 {vr(vT0)}, 2, {vr(vLANE)}
    v_add_u32 {vr(vT0)}, s{sT1}, {vr(vT0)}
    """)
    poll_flags(a, vT0, 8, vT1)
    stamp(a, "flagB")
    order = [(1, h) for h in range(16)] + [(0, h) for h in range(16)]
    def oload(i):
        br, h = order[i]
        a(f"s_mov_b32 s{sT2}, {(br*16+h)*SLOT}")
        a(f"buffer_load_dwordx4 {ar(aO+i*4,4)}, {vr(vOL)}, s[{sO}:{sO+3}], s{sT2} offen sc1")
    for i in range(16): oload(i)
    a("s_waitcnt vmcnt(16)")
    a("s_barrier")
    stamp(a, "gateld")
    for ks in range(14):
        c = "0" if ks == 0 else vr(vG, 4)
        a(f"v_mfma_f32_16x16x32_bf16 {vr(vG,4)}, {vr(vGW+ks*4,4)}, {ar(aX+ks*4,4)}, {c}")
    PF = NRING - 1
    def half(i0):
        steps = [(i, t) for i in range(i0, i0 + 16) for t in range(4)]
        def rd(n):
            i, t = steps[n]
            br, h = order[i]
            va = vTRB if br == 1 else vTRA
            w = vWF + (n % NRING) * 4
            a(f"ds_read_b64_tr_b16 {vr(w,2)}, {vr(va)} offset:{h*3584 + 32*t}")
            a(f"ds_read_b64_tr_b16 {vr(w+2,2)}, {vr(va)} offset:{h*3584 + 32*t + 1792}")
        for n in range(PF): rd(n)
        for n, (i, t) in enumerate(steps):
            if n + PF < len(steps): rd(n + PF)
            if t == 0: a(f"s_waitcnt vmcnt({i0+15-i})")
            a(f"s_waitcnt lgkmcnt({2*min(PF, len(steps)-1-n)})")
            br, h = order[i]
            acc = (vAB if br == 1 else vAA) + t * 4
            c = "0" if h == 0 else vr(acc, 4)
            a(f"v_mfma_f32_16x16x32_bf16 {vr(acc,4)}, {vr(vWF+(n%NRING)*4,4)}, {ar(aO+i*4,4)}, {c}")
    half(0)
    a(f"""
    v_mul_f32 {vr(vG)}, {f2u(-1.4426950408889634)}, {vr(vG)}
    v_exp_f32 {vr(vG)}, {vr(vG)}
    s_nop 0
    v_add_f32 {vr(vG)}, 1.0, {vr(vG)}
    v_rcp_f32 {vr(vG)}, {vr(vG)}
    """)
    stamp(a, "p3B")
    a(f"""
    s_lshr_b32 s{sT0}, s{sRB}, 1
    s_lshl_b32 s{sT0}, s{sT0}, 7
    s_add_u32 s{sT1}, s{sT0}, {F2A}
    v_lshlrev_b32 {vr(vT0)}, 2, {vr(vLANE)}
    v_add_u32 {vr(vT0)}, s{sT1}, {vr(vT0)}
    """)
    poll_flags(a, vT0, 16, vT1)
    stamp(a, "flag2")
    for i in range(16, 32): oload(i)
    steps = [(i, t) for i in range(16, 32) for t in range(4)]
    def rd(n):
        i, t = steps[n]
        br, h = order[i]
        w = vWF + (n % NRING) * 4
        a(f"ds_read_b64_tr_b16 {vr(w,2)}, {vr(vTRA)} offset:{h*3584 + 32*t}")
        a(f"ds_read_b64_tr_b16 {vr(w+2,2)}, {vr(vTRA)} offset:{h*3584 + 32*t + 1792}")
    for n in range(PF): rd(n)
    for n, (i, t) in enumerate(steps):
        if n + PF < len(steps): rd(n + PF)
        if t == 0: a(f"s_waitcnt vmcnt({31-i})")
        a(f"s_waitcnt lgkmcnt({2*min(PF, len(steps)-1-n)})")
        br, h = order[i]
        acc = vAA + t * 4
        c = "0" if h == 0 else vr(acc, 4)
        a(f"v_mfma_f32_16x16x32_bf16 {vr(acc,4)}, {vr(vWF+(n%NRING)*4,4)}, {ar(aO+i*4,4)}, {c}")
    a("s_nop 7")
    for t in range(4):
        for r in range(4):
            x, y = vAA + t * 4 + r, vAB + t * 4 + r
            a(f"v_sub_f32 {vr(x)}, {vr(x)}, {vr(y)}")
            a(f"v_fma_f32 {vr(x)}, {vr(x)}, {vr(vG)}, {vr(y)}")
    for p in range(2):
        x, y = vAA + (2 * p) * 4, vAA + (2 * p + 1) * 4
        d = vAB + p * 4
        a(f"""
        v_cvt_pk_bf16_f32 {vr(d)}, {vr(x)}, {vr(x+1)}
        v_cvt_pk_bf16_f32 {vr(d+1)}, {vr(x+2)}, {vr(x+3)}
        v_cvt_pk_bf16_f32 {vr(d+2)}, {vr(y)}, {vr(y+1)}
        v_cvt_pk_bf16_f32 {vr(d+3)}, {vr(y+2)}, {vr(y+3)}
        s_nop 1
        v_permlane16_swap_b32 {vr(d)}, {vr(d+2)}
        v_permlane16_swap_b32 {vr(d+1)}, {vr(d+3)}
        """)
    a(f"""
    s_nop 0
    buffer_store_dwordx4 {vr(vAB,4)}, {vr(vOUT)}, s[{sOUT}:{sOUT+3}], 0 offen
    s_mov_b32 exec_hi, 0x0000ffff
    buffer_store_dwordx4 {vr(vAB+4,4)}, {vr(vOUT)}, s[{sOUT}:{sOUT+3}], 0 offen offset:64
    s_mov_b32 exec_hi, -1
    """)

def gen_kernel(a):
    a("s_cmp_ge_u32 s2, 256\ns_cbranch_scc1 K_END")
    a(f"s_load_dwordx16 s[64:79], s[0:1], 0\ns_load_dwordx4 s[80:83], s[0:1], 64")
    if G.stamps:
        a("s_memrealtime s[50:51]\ns_memtime s[48:49]\ns_waitcnt lgkmcnt(0)\nv_writelane_b32 v254, s50, 0\nv_writelane_b32 v254, s48, 1")
    if G.dbgtime: a("s_memrealtime s[46:47]\ns_memtime s[52:53]")
    a(f"""
    v_and_b32 {vr(vLANE)}, 63, v0
    v_lshrrev_b32 v2, 6, v0
    s_and_b32 s{sXCD}, s2, 7
    v_readfirstlane_b32 s{sWAVE}, v2
    s_lshr_b32 s{sIDX}, s2, 3
    """)
    if G.prefetch:
        a("s_getpc_b64 s[60:61]")
        a.label("PF_BASE")
        a("v_lshlrev_b32 v3, 6, v0")
        for j in range(3):
            a(f"""
            v_cmp_gt_u32 vcc, K_CODE_END-PF_BASE, v3
            s_and_saveexec_b64 s[62:63], vcc
            s_cbranch_execz PF_skip{j}
            global_load_dword v255, v3, s[60:61]
            """)
            a.label(f"PF_skip{j}")
            a("s_mov_b64 exec, s[62:63]")
            if j < 2: a("v_add_u32 v3, 16384, v3")
    L = "NONCE_skip"
    a(f"""
    s_or_b32 s60, s2, s{sWAVE}
    s_cmp_lg_u32 s60, 0
    s_cbranch_scc1 {L}
    s_memrealtime s[60:61]
    s_waitcnt lgkmcnt(0)
    s_or_b32 s60, s60, 1
    v_mov_b32 v2, 0
    v_mov_b32 v3, s60
    s_mov_b64 exec, 1
    global_store_dword v2, v3, s[{pDBG}:{pDBG+1}] sc1
    s_mov_b64 exec, -1
    """)
    a.label(L)
    gen_p1(a)
    gen_p2(a)
    gen_p3(a)
    if G.stamps:
        a("s_waitcnt vmcnt(0)")
        stamp(a, "end")
        a(f"s_cmp_lg_u32 s{sWAVE}, 0\ns_cbranch_scc1 K_END")
        a(f"s_lshl_b32 s62, s2, 8\ns_add_u32 s62, s62, {OFF_ST}")
        a(f"s_add_u32 s4, s{pWS}, s62\ns_addc_u32 s5, s{pWS+1}, 0")
        a("v_lshlrev_b32 v2, 2, v1\nglobal_store_dword v2, v254, s[4:5]")
    if G.spinto:
        a.label("SPIN_T")
        a(f"""
        s_memrealtime s[48:49]
        s_waitcnt lgkmcnt(0)
        s_sub_u32 s48, s48, s{sNONCE}
        s_cmp_lt_u32 s48, {G.spinto}
        s_cbranch_scc1 SPIN_T
        """)
    if G.dbgtime:
        a("s_waitcnt vmcnt(0)")
        a("s_memrealtime s[48:49]\ns_memtime s[54:55]\ns_waitcnt lgkmcnt(0)")
        a(f"s_cmp_lg_u32 s{sWAVE}, 0\ns_cbranch_scc1 K_END")
        a("""
        s_not_b32 s46, s46
        s_sub_u32 s54, s54, s52
        v_mov_b32 v2, 0
        v_mov_b32 v3, s48
        v_mov_b32 v4, s46
        v_mov_b32 v5, s54
        s_mov_b64 exec, 1
        """)
        a(f"global_atomic_umax v2, v3, s[{pDBG}:{pDBG+1}] offset:4")
        a(f"global_atomic_umax v2, v4, s[{pDBG}:{pDBG+1}] offset:8")
        a(f"global_atomic_umax v2, v5, s[{pDBG}:{pDBG+1}] offset:12")
    a.label("K_END")
    a("s_endpgm")
    a.label("K_CODE_END")

def build(path):
    hdr = open("cdna_kernels/" + NAME + ".s.ref").read().split("\n")
    comments = [l for l in hdr if l.startswith(";") and "@launch" not in l and "Override launch" not in l and "grid=ceil" not in l]
    out = "\n".join(comments) + "\n"
    out += "; @launch grid=(256,1,1) block=(256,1,1) lds=163840\n"
    out += '.amdgcn_target "amdgcn-amd-amdhsa--gfx950"\n.text\n'
    a = Asm(); gen_kernel(a)
    out += kernel_header(KNAME) + a.text()
    out += '.section .rodata,"a"\n' + kernel_desc(KNAME, 512, 102, 256)
    open(path, "w").write(out)

if __name__ == "__main__":
    G.stamps = "--stamps" in sys.argv
    G.prefetch = "--nopf" not in sys.argv
    G.dbgtime = "--dbgtime" in sys.argv
    for x in sys.argv:
        if x.startswith("--spinto="): G.spinto = int(x.split("=")[1])
    build(sys.argv[1])
    if G.stamps: open(sys.argv[1] + ".names", "w").write("\n".join(STAMP_NAMES))
```
